```python
import torch

def _softmax(x, axis=-1):
    return torch.softmax(x, dim=axis)
def _gelu(x):
    return torch.nn.functional.gelu(x, approximate="tanh")
def _silu(x):
    return torch.nn.functional.silu(x)
def _sigmoid(x):
    return torch.sigmoid(x)
def _layernorm(x, axis=-1, eps=1e-5):
    m = x.mean(dim=axis, keepdim=True)
    v = x.var(dim=axis, keepdim=True, unbiased=False)
    return (x - m) / torch.sqrt(v + eps)
def _scatter_add(tgt, idx, src, axis=0):
    return tgt.clone().index_add_(axis, idx, src)
def _segment_sum(src, seg, n):
    out = torch.zeros((n,) + src.shape[1:], dtype=src.dtype)
    return out.index_add_(0, seg, src)
def _pad(x, pw):
    flat = tuple(v for pair in reversed(pw) for v in pair)
    return torch.nn.functional.pad(x, flat)

kernel_name = 'interleave_layers__ssm_conv_s4d__glu_gated_swiglu__prompt'

def setup_inputs():

    _w = (lambda a: (lambda t: t.to(torch.bfloat16) if t.is_floating_point() else t)(torch.as_tensor(a)))
    def _A_setup():
        Bsz, L, D, N = 1, 2048, 512, 128
        return {
            "u": _w((lambda *s: torch.randn(*s, dtype=torch.bfloat16) * 0.05)(Bsz, L, D)),
            "log_A_real": _w((lambda *s: torch.randn(*s, dtype=torch.bfloat16) * 3.2)(D, N) * 0.5),
            "A_imag": _w((lambda *s: torch.randn(*s, dtype=torch.bfloat16) * 0.05)(D, N) * 3.14),
            "C_real": _w((lambda *s: torch.randn(*s, dtype=torch.bfloat16) * 0.05)(D, N) / N ** 0.5),
            "C_imag": _w((lambda *s: torch.randn(*s, dtype=torch.bfloat16) * 0.05)(D, N) / N ** 0.5),
            "log_dt": _w((lambda *s: torch.randn(*s, dtype=torch.bfloat16) * 0.05)(D) * 0.5 - 4.0),
            "D_skip": _w((lambda *s: torch.randn(*s, dtype=torch.bfloat16) * 0.05)(D)),
        }
    _A_in = _A_setup()

    def _B_setup():
        B, S, D, F = 1, 2048, 512, 1376
        return {
            "x": _w((lambda *s: torch.randn(*s, dtype=torch.bfloat16) * 0.05)(B, S, D)),
            "w1": _w((lambda *s: torch.randn(*s, dtype=torch.bfloat16) * 0.4)(D, F) * (2.0 / D) ** 0.5),
            "w3": _w((lambda *s: torch.randn(*s, dtype=torch.bfloat16) * 0.4)(D, F) * (2.0 / D) ** 0.5),
            "w2": _w((lambda *s: torch.randn(*s, dtype=torch.bfloat16) * 0.4)(F, D) * (2.0 / F) ** 0.5),
        }
    _B_in = _B_setup()

    return {
        "A_u": _A_in["u"],
        "A_log_A_real": _A_in["log_A_real"],
        "A_A_imag": _A_in["A_imag"],
        "A_C_real": _A_in["C_real"],
        "A_C_imag": _A_in["C_imag"],
        "A_log_dt": _A_in["log_dt"],
        "A_D_skip": _A_in["D_skip"],
        "B_x": _B_in["x"],
        "B_w1": _B_in["w1"],
        "B_w3": _B_in["w3"],
        "B_w2": _B_in["w2"],
    }

def reference(A_u, A_log_A_real, A_A_imag, A_C_real, A_C_imag, A_log_dt, A_D_skip, B_x, B_w1, B_w3, B_w2):
    def _A_ref(u, log_A_real, A_imag, C_real, C_imag, log_dt, D_skip):
        L = u.shape[1]
        dt = torch.exp(log_dt)
        A = -torch.exp(log_A_real) + 1j * A_imag
        C = (C_real + 1j * C_imag) * dt[:, None]
        pos = (lambda x, dt: x.to(dt))(torch.arange(L), log_dt.dtype)
        P = torch.exp((A * dt[:, None])[:, :, None] * pos[None, None, :])
        K = 2.0 * torch.einsum("dn,dnl->dl", C, P).real
        L2 = 2 * L
        u_t = (lambda x, *d: x.permute(*d))(u, 0, 2, 1)
        Kf = (lambda x, *a, **k: torch.fft.rfft(x.float(), *a, **k))(K, L2)
        Uf = (lambda x, *a, **k: torch.fft.rfft(x.float(), *a, **k))(u_t, L2)
        y = (lambda x, *a, **k: torch.fft.irfft(x, *a, **k).to(torch.bfloat16))(Uf * Kf[None, :, :], L2)[:, :, :L]
        y = (lambda x, *d: x.permute(*d))(y, 0, 2, 1)
        return y + u * D_skip[None, None, :]

    def _B_ref(x, w1, w3, w2):
        gate = torch.einsum("bsd,df->bsf", x, w1)
        up = torch.einsum("bsd,df->bsf", x, w3)
        h = _silu(gate) * up
        out = torch.einsum("bsf,fd->bsd", h, w2)
        return out

    x = A_u
    x = x + _A_ref(_layernorm(x, axis=-1), A_log_A_real, A_A_imag, A_C_real, A_C_imag, A_log_dt, A_D_skip)
    x = x + _B_ref(_layernorm(x, axis=-1), B_w1, B_w3, B_w2)
    x = x + _A_ref(_layernorm(x, axis=-1), A_log_A_real, A_A_imag, A_C_real, A_C_imag, A_log_dt, A_D_skip)
    x = x + _B_ref(_layernorm(x, axis=-1), B_w1, B_w3, B_w2)
    return x
```

```python
import re

TRANS = ("v_exp_f32", "v_log_f32", "v_rcp_f32", "v_rsq_f32", "v_sqrt_f32", "v_sin_f32", "v_cos_f32")

def parse_regs(tok):
    tok = tok.strip()
    out = set()
    m = re.fullmatch(r"-?\|?([vsa])(\d+)\|?", tok)
    if m:
        out.add((m.group(1), int(m.group(2))))
        return out
    m = re.fullmatch(r"([vsa])\[(\d+):(\d+)\]", tok)
    if m:
        for i in range(int(m.group(2)), int(m.group(3)) + 1):
            out.add((m.group(1), i))
        return out
    if tok in ("vcc", "vcc_lo", "vcc_hi"):
        out.add(("vcc", 0))
    if tok == "exec":
        out.add(("exec", 0))
    if tok == "m0":
        out.add(("m0", 0))
    return out

class Ins:
    def __init__(self, text):
        self.text = text
        t = text.split(";")[0].strip()
        self.is_label = t.endswith(":")
        self.op = ""
        self.ops = []
        self.w = set(); self.r = set()
        self.kind = "other"
        self.states = 1
        if not t or self.is_label or t.startswith("."):
            self.kind = "meta"; self.states = 0
            return
        parts = t.split(None, 1)
        self.op = parts[0]
        rest = parts[1] if len(parts) > 1 else ""
        toks = [x.strip() for x in rest.split(",")]
        ops = []
        mods = ""
        for i, tk in enumerate(toks):
            sp = tk.split()
            if len(sp) > 1:
                ops.append(sp[0]); mods += " " + " ".join(sp[1:])
            elif sp:
                ops.append(sp[0])
        self.ops = ops; self.mods = mods
        op = self.op
        R = lambda k: parse_regs(ops[k]) if k < len(ops) else set()
        allr = lambda lo: set().union(*[parse_regs(o) for o in ops[lo:]]) if len(ops) > lo else set()
        if op == "s_nop":
            self.kind = "salu"; self.states = int(ops[0], 0) + 1
        elif op.startswith("v_mfma"):
            self.kind = "mfma"
            self.w = R(0); self.ra = R(1) | R(2); self.rc = R(3); self.r = self.ra | self.rc
            if "32x32x16" in op or "16x16x4_f32" in op: self.passes = 8
            elif "16x16x32" in op: self.passes = 4
            elif "32x32x2_f32" in op: self.passes = 16
            else: raise Exception("unknown mfma " + op)
            self.sgemm = op.endswith("_f32") and ("x4_f32" in op or "x2_f32" in op)
        elif op.startswith("v_"):
            self.kind = "valu"
            self.trans = any(op.startswith(x) for x in TRANS)
            self.dpp = ("dpp" in op) or ("quad_perm" in mods) or ("row_" in mods)
            if op.startswith("v_cmp"):
                self.w = R(0); self.r = allr(1)
            elif op.startswith("v_readlane") or op.startswith("v_readfirstlane"):
                self.w = R(0); self.r = allr(1)
            elif op.startswith("v_add_co") or op.startswith("v_sub_co") or op.startswith("v_addc_co") or op.startswith("v_subb_co"):
                self.w = R(0) | R(1); self.r = allr(2)
            elif op.startswith("v_permlane"):
                self.w = R(0) | R(1); self.r = R(0) | R(1)
            elif op.startswith("v_fmac") or op.startswith("v_pk_fmac"):
                self.w = R(0); self.r = allr(0)
            else:
                self.w = R(0); self.r = allr(1)
                if op.startswith("v_cndmask") and len(ops) == 3:
                    self.r |= {("vcc", 0)}
        elif op.startswith("buffer_") or op.startswith("global_"):
            self.kind = "vmem"
            if "load" in op and "lds" not in mods:
                self.w = R(0); self.r = allr(1)
            else:
                self.r = allr(0)
                self.store = True
        elif op.startswith("ds_"):
            self.kind = "ds"
            if op.startswith("ds_read") or op.startswith("ds_bpermute") or op.startswith("ds_swizzle") or op.startswith("ds_permute"):
                self.w = R(0); self.r = allr(1)
            else:
                self.r = allr(0)
        elif op.startswith("s_"):
            self.kind = "salu"
            if op.startswith("s_cmp") or op.startswith("s_cbranch") or op.startswith("s_branch") or op in ("s_waitcnt", "s_barrier", "s_endpgm", "s_setprio", "s_sleep"):
                self.r = allr(0)
            else:
                self.w = R(0); self.r = allr(1)

def need_states(prev, cur):
    n = 0
    if prev.kind == "valu":
        vw = {x for x in prev.w if x[0] in "va"}
        sw = {x for x in prev.w if x[0] not in "va"}
        if cur.kind == "mfma" and (vw & cur.r): n = max(n, 2)
        if cur.kind == "valu":
            if prev.trans and (vw & cur.r) and not cur.trans: n = max(n, 1)
            if prev.trans and (vw & cur.r) and cur.trans: n = max(n, 1)
            if cur.dpp and (vw & cur.r): n = max(n, 2)
            if (cur.op.startswith("v_readlane") or cur.op.startswith("v_readfirstlane")) and (vw & cur.r): n = max(n, 1)
            if cur.op.startswith("v_permlane") and (vw & cur.r): n = max(n, 2)
            if sw & cur.r: n = max(n, 2)
            if (cur.op.startswith("v_readlane") or cur.op.startswith("v_writelane")) and (sw & cur.r): n = max(n, 4)
        if cur.kind == "vmem" and (sw & cur.r): n = max(n, 5)
        if cur.kind == "salu" and (sw & cur.r): n = max(n, 2)
    if prev.kind == "mfma":
        p = prev.passes
        if prev.sgemm:
            t_val = {4: 6, 8: 10, 16: 18}[p]; t_c = {4: 4, 8: 8, 16: 16}[p]
        else:
            t_val = {4: 8, 8: 12, 16: 20}[p]; t_c = {4: 6, 8: 10, 16: 18}[p]
        if cur.kind == "mfma":
            if prev.w & cur.ra: n = max(n, t_val)
            if prev.w & cur.rc:
                if prev.w == cur.rc and prev.passes == cur.passes and prev.sgemm == cur.sgemm:
                    pass
                else:
                    n = max(n, t_c)
        elif cur.kind in ("valu", "vmem", "ds"):
            if prev.w & (cur.r | cur.w): n = max(n, t_val)
            if cur.kind == "valu" and not prev.sgemm and (prev.rc & cur.w):
                n = max(n, {4: 3, 8: 7, 16: 15}[p])
    if prev.kind == "vmem" and getattr(prev, "store", False) and ("x4" in prev.op or "x3" in prev.op):
        data = parse_regs(prev.ops[0]) if prev.op.startswith("buffer_") else parse_regs(prev.ops[1])
        if cur.kind == "valu" and (data & cur.w): n = max(n, 2)
        elif data & cur.w: n = max(n, 1)
    if prev.kind == "salu" and ("m0", 0) in prev.w and cur.kind == "vmem" and "lds" in getattr(cur, "mods", ""):
        n = max(n, 1)
    return n

def fix_hazards(lines):
    out = []
    hist = []
    for ln in lines:
        ins = Ins(ln)
        if ins.kind == "meta":
            out.append(ln); continue
        dist = 0
        pad = 0
        for prev in reversed(hist[-24:]):
            need = need_states(prev, ins)
            if need > dist:
                pad = max(pad, need - dist)
            dist += prev.states
            if dist > 24: break
        while pad > 0:
            k = min(pad, 16)
            nop = "    s_nop %d" % (k - 1)
            out.append(nop); hist.append(Ins(nop)); pad -= k
        out.append(ln); hist.append(ins)
    return out

class Kern:
    def __init__(self, name):
        self.name = name
        self.L = []
    def e(self, s):
        for x in s.strip("\n").split("\n"):
            x = x.strip()
            if not x: continue
            if x.endswith(":"): self.L.append(x)
            else: self.L.append("    " + x)
    def srd(self, d, base, off, size):
        if off:
            self.e(f"s_add_u32 s{d}, s{base}, {hex(off)}")
            self.e(f"s_addc_u32 s{d+1}, s{base+1}, 0")
        else:
            self.e(f"s_mov_b32 s{d}, s{base}")
            self.e(f"s_mov_b32 s{d+1}, s{base+1}")
        self.e(f"s_mov_b32 s{d+2}, {hex(size)}")
        self.e(f"s_mov_b32 s{d+3}, 0x20000")
    def text(self, vgpr, sgpr=102, agpr=0):
        body = fix_hazards(self.L)
        acc = (vgpr + 3) // 4 * 4
        nfv = acc + agpr if agpr else vgpr
        hdr = [f".text", f".globl {self.name}", ".p2align 8", f".type {self.name},@function", f"{self.name}:"]
        desc = [".section .rodata,\"a\"", ".p2align 6", f".amdhsa_kernel {self.name}",
                f"  .amdhsa_next_free_vgpr {nfv}", f"  .amdhsa_next_free_sgpr {sgpr}",
                f"  .amdhsa_accum_offset {acc}", "  .amdhsa_group_segment_fixed_size 0",
                "  .amdhsa_kernarg_size 112", "  .amdhsa_user_sgpr_count 2",
                "  .amdhsa_user_sgpr_kernarg_segment_ptr 1", "  .amdhsa_system_sgpr_workgroup_id_x 1",
                ".end_amdhsa_kernel"]
        return "\n".join(hdr + body + desc) + "\n"
```

```python
import sys
from asmlib import Kern

NAME = "interleave_layers__ssm_conv_s4d__glu_gated_swiglu__prompt"

KROW = 2304
OFF_K16  = 0x0000000
OFF_KSC  = 0x0240000
OFF_ST1  = 0x0241000
OFF_ST2  = 0x0245000
OFF_XT   = 0x0250000
OFF_YT   = 0x0450000
OFF_X1   = 0x0650000
OFF_X2   = 0x0850000
OFF_X3   = 0x0A50000
OFF_AP   = 0x0C50000
OFF_HP   = 0x0E50000
OFF_W13P = 0x13B0000
OFF_W2P  = 0x1660000
MB2 = 0x200000

LOG2E = "0x3fb8aa3b"
INV2PI = "0x3e22f983"

def load_args(k):
    k.e("""
    s_load_dwordx16 s[4:19], s[0:1], 0
    s_load_dwordx8 s[20:27], s[0:1], 64
    s_load_dwordx4 s[28:31], s[0:1], 96
    """)

def bf16r(k, dst, src, tmp=None):
    t = tmp if tmp is not None else dst
    k.e(f"v_cvt_pk_bf16_f32 v{t}, v{src}, v{src}")
    k.e(f"v_lshlrev_b32 v{dst}, 16, v{t}")

def wave_reduce(k, v, op, t, s0):
    for ctrl in ("quad_perm:[1,0,3,2]", "quad_perm:[2,3,0,1]", "row_half_mirror", "row_mirror"):
        k.e(f"{op}_dpp v{v}, v{v}, v{v} {ctrl} row_mask:0xf bank_mask:0xf")
    for j in range(4):
        k.e(f"v_readlane_b32 s{s0+j}, v{v}, {16*j}")
    k.e(f"v_mov_b32 v{v}, s{s0}")
    for j in range(1, 4):
        k.e(f"{op} v{v}, s{s0+j}, v{v}")

def gen_prep():
    k = Kern("prep_kernel")
    e = k.e
    NK, NX, NW13, NW2 = 512, 128, 86, 43
    e(f"s_cmp_ge_u32 s2, {NK+NX+NW13+NW2}")
    e("s_cbranch_scc1 prep_done")
    load_args(k)
    e("v_and_b32 v1, 63, v0")
    e(f"s_cmp_ge_u32 s2, {NK+NX+NW13}")
    e("s_cbranch_scc1 prep_w2")
    e(f"s_cmp_ge_u32 s2, {NK+NX}")
    e("s_cbranch_scc1 prep_w13")
    e(f"s_cmp_ge_u32 s2, {NK}")
    e("s_cbranch_scc1 prep_xt")
    e("s_waitcnt lgkmcnt(0)")
    k.srd(44, 6, 0, 131072); k.srd(48, 8, 0, 131072); k.srd(52, 10, 0, 131072); k.srd(56, 12, 0, 131072)
    e("""
    v_and_b32 v2, 15, v0
    v_lshrrev_b32 v3, 4, v0
    v_lshlrev_b32 v3, 4, v3
    s_lshl_b32 s40, s2, 8
    buffer_load_dwordx4 v[8:11], v3, s[44:47], s40 offen
    buffer_load_dwordx4 v[12:15], v3, s[48:51], s40 offen
    buffer_load_dwordx4 v[16:19], v3, s[52:55], s40 offen
    buffer_load_dwordx4 v[20:23], v3, s[56:59], s40 offen
    s_lshr_b32 s42, s2, 1
    s_lshl_b32 s42, s42, 2
    s_load_dword s41, s[14:15], s42
    s_and_b32 s43, s2, 1
    s_lshl_b32 s43, s43, 4
    s_waitcnt lgkmcnt(0)
    s_lshr_b32 s41, s41, s43
    s_lshl_b32 s41, s41, 16
    v_mov_b32 v4, s41
    """)
    e(f"v_mul_f32 v4, {LOG2E}, v4")
    e("v_exp_f32 v4, v4")
    bf16r(k, 4, 4)
    e("""
    v_and_b32 v24, 7, v2
    v_lshrrev_b32 v25, 3, v2
    v_lshl_add_u32 v26, v25, 7, v24
    v_cvt_f32_u32 v26, v26
    v_and_b32 v24, 3, v2
    v_lshlrev_b32 v24, 1, v24
    v_lshrrev_b32 v25, 2, v2
    v_lshl_add_u32 v24, v25, 7, v24
    v_add_u32 v24, 256, v24
    v_and_b32 v25, 1, v2
    v_lshlrev_b32 v25, 2, v25
    v_lshrrev_b32 v27, 1, v2
    v_lshl_add_u32 v25, v27, 7, v25
    v_cmp_gt_u32 vcc, 8, v2
    v_cndmask_b32 v27, v25, v24, vcc
    v_cvt_f32_u32 v27, v27
    v_lshlrev_b32 v24, 7, v2
    v_add_u32 v24, 1024, v24
    v_min_u32 v24, 2048, v24
    v_cvt_f32_u32 v28, v24
    v_lshlrev_b32 v24, 3, v2
    v_cvt_f32_u32 v29, v24
    """)
    for r in range(12):
        e(f"v_mov_b32 v{32+r}, 0")
    e("s_waitcnt vmcnt(0)")
    for tau in range(8):
        dw = tau >> 1
        def ext(dst, base):
            if tau & 1: e(f"v_and_b32 v{dst}, 0xffff0000, v{base+dw}")
            else: e(f"v_lshlrev_b32 v{dst}, 16, v{base+dw}")
        ext(48, 8); ext(49, 12); ext(50, 16); ext(51, 20)
        e(f"v_mul_f32 v48, {LOG2E}, v48")
        e("v_exp_f32 v48, v48")
        bf16r(k, 48, 48)
        e("v_mul_f32 v48, v48, v4")
        e(f"v_mul_f32 v48, 0xbfb8aa3b, v48")
        e("v_mul_f32 v49, v49, v4")
        e(f"v_mul_f32 v49, {INV2PI}, v49")
        e("v_mul_f32 v50, v50, v4")
        e("v_add_f32 v50, v50, v50")
        e("v_mul_f32 v51, v51, v4")
        e("v_add_f32 v51, v51, v51")
        e("""
        v_mul_f32 v52, v48, v29
        v_mul_f32 v53, v49, v29
        v_exp_f32 v52, v52
        v_fract_f32 v53, v53
        v_cos_f32 v54, v53
        v_sin_f32 v55, v53
        v_mul_f32 v56, v50, v54
        v_fma_f32 v56, -v51, v55, v56
        v_mul_f32 v57, v50, v55
        v_fma_f32 v57, v51, v54, v57
        v_mul_f32 v56, v52, v56
        v_mul_f32 v57, -v52, v57
        """)
        for r in range(3):
            b = 60 + 4 * r
            e(f"""
            v_mul_f32 v{b}, v48, v{26+r}
            v_mul_f32 v{b+1}, v49, v{26+r}
            v_exp_f32 v{b}, v{b}
            v_fract_f32 v{b+1}, v{b+1}
            v_cos_f32 v{b+2}, v{b+1}
            v_sin_f32 v{b+3}, v{b+1}
            v_mul_f32 v{b+2}, v{b}, v{b+2}
            v_mul_f32 v{b+3}, v{b}, v{b+3}
            """)
        for r in range(3):
            b = 60 + 4 * r
            e(f"v_mfma_f32_16x16x4_f32 v[{32+4*r}:{35+4*r}], v{b+2}, v56, v[{32+4*r}:{35+4*r}]")
        for r in range(3):
            b = 60 + 4 * r
            e(f"v_mfma_f32_16x16x4_f32 v[{32+4*r}:{35+4*r}], v{b+3}, v57, v[{32+4*r}:{35+4*r}]")
    e("""
    v_lshrrev_b32 v5, 6, v0
    v_mul_u32_u24 v6, 3072, v5
    v_lshl_add_u32 v6, v1, 4, v6
    """)
    for r in range(3):
        e(f"ds_write_b128 v6, v[{32+4*r}:{35+4*r}] offset:{1024*r}")
    e("""
    s_waitcnt lgkmcnt(0)
    s_barrier
    v_readfirstlane_b32 s40, v5
    s_cmp_eq_u32 s40, 3
    s_cbranch_scc1 kg_tab_done
    v_lshlrev_b32 v6, 4, v0
    ds_read_b128 v[32:35], v6
    ds_read_b128 v[36:39], v6 offset:3072
    ds_read_b128 v[40:43], v6 offset:6144
    ds_read_b128 v[44:47], v6 offset:9216
    v_lshrrev_b32 v7, 4, v1
    s_waitcnt lgkmcnt(0)
    """)
    for q in range(4):
        e(f"v_add_f32 v{32+q}, v{32+q}, v{36+q}")
        e(f"v_add_f32 v{40+q}, v{40+q}, v{44+q}")
        e(f"v_add_f32 v{32+q}, v{32+q}, v{40+q}")
    e("""
    s_cmp_eq_u32 s40, 1
    s_cbranch_scc1 kg_t1
    s_cmp_eq_u32 s40, 2
    s_cbranch_scc1 kg_t2
    v_and_b32 v24, 1, v7
    v_lshlrev_b32 v24, 2, v24
    v_lshrrev_b32 v25, 1, v7
    v_lshl_add_u32 v24, v25, 7, v24
    v_lshl_add_u32 v48, v2, 3, v24
    v_add_u32 v49, 1, v48
    v_add_u32 v50, 2, v48
    v_add_u32 v51, 3, v48
    s_branch kg_tw
kg_t1:
    v_lshlrev_b32 v24, 6, v7
    v_lshl_add_u32 v24, v2, 2, v24
    v_add_u32 v24, 256, v24
    v_lshlrev_b32 v25, 6, v7
    v_lshl_add_u32 v25, v2, 1, v25
    v_add_u32 v25, 256, v25
    v_cmp_gt_u32 vcc, 2, v7
    v_cndmask_b32 v48, v25, v24, vcc
    v_add_u32 v49, 1, v48
    v_add_u32 v24, 2, v24
    v_add_u32 v25, 32, v25
    v_cndmask_b32 v50, v25, v24, vcc
    v_add_u32 v51, 1, v50
    s_branch kg_tw
kg_t2:
    v_lshlrev_b32 v24, 6, v7
    v_add_u32 v24, v2, v24
    v_add_u32 v24, 512, v24
    v_mov_b32 v25, 700
    v_cmp_gt_u32 vcc, 2, v7
    v_cndmask_b32 v48, v25, v24, vcc
    v_add_u32 v49, 16, v24
    v_cndmask_b32 v49, v25, v49, vcc
    v_add_u32 v50, 32, v24
    v_cndmask_b32 v50, v25, v50, vcc
    v_add_u32 v51, 48, v24
    v_cndmask_b32 v51, v25, v51, vcc
    v_mov_b32 v24, 640
    v_cmp_eq_u32 vcc, 32, v1
    v_cndmask_b32 v48, v48, v24, vcc
kg_tw:
    """)
    for q in range(4):
        e(f"v_lshlrev_b32 v{48+q}, 2, v{48+q}")
        e(f"ds_write_b32 v{48+q}, v{32+q} offset:12288")
    e("""
kg_tab_done:
    s_waitcnt lgkmcnt(0)
    s_barrier
    v_lshlrev_b32 v6, 2, v0
    ds_read_b32 v32, v6 offset:12288
    ds_read_b32 v33, v6 offset:13312
    v_min_u32 v7, 128, v0
    v_lshlrev_b32 v7, 2, v7
    ds_read_b32 v34, v7 offset:14336
    s_waitcnt lgkmcnt(0)
    v_max_f32 v32, |v32|, |v33|
    v_max_f32 v32, |v34|, v32
    """)
    wave_reduce(k, 32, "v_max_f32", 33, 60)
    e("""
    v_lshlrev_b32 v6, 2, v5
    ds_write_b32 v6, v32 offset:16384
    s_waitcnt lgkmcnt(0)
    s_barrier
    v_mov_b32 v6, 0
    ds_read_b128 v[32:35], v6 offset:16384
    s_waitcnt lgkmcnt(0)
    v_max_f32 v32, v32, v33
    v_max_f32 v34, v34, v35
    v_max_f32 v32, v32, v34
    v_lshrrev_b32 v32, 23, v32
    v_max_u32 v32, 32, v32
    v_min_u32 v32, 254, v32
    v_sub_u32 v33, 268, v32
    v_lshlrev_b32 v33, 23, v33
    v_subrev_u32 v34, 14, v32
    v_lshlrev_b32 v34, 23, v34
    """)
    e("""
    v_lshlrev_b32 v6, 3, v0
    v_or_b32 v7, 128, v6
    v_ffbh_u32 v7, v7
    v_sub_u32 v7, 24, v7
    v_lshlrev_b32 v8, 1, 1
    v_lshlrev_b32 v8, v7, 1
    v_lshrrev_b32 v8, 1, v8
    v_subrev_u32 v8, 1, v8
    v_lshlrev_b32 v9, 7, v7
    v_cmp_lt_u32 vcc, 0, v7
    """)
    for ee in range(8):
        e(f"""
        v_add_u32 v10, {ee}, v6
        v_lshrrev_b32 v11, v7, v10
        v_and_b32 v11, 1, v11
        v_add_u32 v11, v8, v11
        v_cndmask_b32 v11, 0, v11, vcc
        v_add_u32 v10, v10, v11
        v_lshrrev_b32 v10, v7, v10
        v_add_u32 v10, v9, v10
        v_lshlrev_b32 v10, 2, v10
        ds_read_b32 v{40+ee}, v10 offset:12288
        """)
    e("s_waitcnt lgkmcnt(0)")
    for ee in range(8):
        e(f"v_mul_f32 v{40+ee}, v{40+ee}, v33")
    for p in range(4):
        e(f"v_cvt_pkrtz_f16_f32 v{48+p}, v{40+2*p}, v{41+2*p}") if False else None
        e(f"v_cvt_f16_f32 v{40+2*p}, v{40+2*p}")
        e(f"v_cvt_f16_f32 v{41+2*p}, v{41+2*p}")
        e(f"v_pack_b32_f16 v{48+p}, v{40+2*p}, v{41+2*p}")
    k.srd(44, 30, OFF_K16, 512 * KROW * 2)
    k.srd(48, 30, OFF_KSC, 2048)
    e(f"""
    s_mul_i32 s40, s2, {KROW*2}
    v_lshlrev_b32 v6, 4, v0
    buffer_store_dwordx4 v[48:51], v6, s[44:47], s40 offen offset:128
    v_mov_b32 v52, 0
    v_mov_b32 v53, 0
    v_mov_b32 v54, 0
    v_mov_b32 v55, 0
    v_add_u32 v7, {(2112-64)*2}, v6
    v_cmp_gt_u32 vcc, 8, v0
    v_cndmask_b32 v7, v7, v6, vcc
    v_cmp_gt_u32 vcc, 32, v0
    s_and_saveexec_b64 s[60:61], vcc
    s_cbranch_execz kg_z
    buffer_store_dwordx4 v[52:55], v7, s[44:47], s40 offen
kg_z:
    s_mov_b64 exec, s[60:61]
    v_cmp_eq_u32 vcc, 0, v0
    s_and_saveexec_b64 s[60:61], vcc
    s_cbranch_execz kg_z2
    s_lshl_b32 s41, s2, 2
    v_mov_b32 v7, 0
    buffer_store_dword v34, v7, s[48:51], s41 offen
kg_z2:
    s_endpgm
    """)
    e("""
prep_xt:
    s_waitcnt lgkmcnt(0)
    """)
    k.srd(44, 4, 0, MB2)
    k.srd(48, 30, OFF_XT, MB2)
    k.srd(52, 30, OFF_ST1, 16384)
    k.srd(56, 30, OFF_ST2, 16384)
    e(f"""
    s_sub_u32 s40, s2, {NK}
    v_lshrrev_b32 v5, 6, v0
    s_lshl_b32 s41, s40, 14
    v_lshlrev_b32 v6, 12, v5
    v_lshl_add_u32 v6, v1, 4, v6
    buffer_load_dwordx4 v[8:11], v6, s[44:47], s41 offen
    buffer_load_dwordx4 v[12:15], v6, s[44:47], s41 offen offset:1024
    buffer_load_dwordx4 v[16:19], v6, s[44:47], s41 offen offset:2048
    buffer_load_dwordx4 v[20:23], v6, s[44:47], s41 offen offset:3072
    s_lshl_b32 s42, s40, 5
    v_lshlrev_b32 v7, 15, v1
    v_lshl_add_u32 v7, v5, 3, v7
    s_mov_b32 s43, 0x07060302
    s_mov_b32 s46, 0x05040100
    s_waitcnt vmcnt(0)
    """)
    for ee in range(8):
        dw = ee >> 1
        sel = "s43" if ee & 1 else "s46"
        e(f"v_perm_b32 v{24+2*ee}, v{12+dw}, v{8+dw}, {sel}")
        e(f"v_perm_b32 v{25+2*ee}, v{20+dw}, v{16+dw}, {sel}")
    for ee in range(8):
        if ee < 1:
            e(f"buffer_store_dwordx2 v[{24+2*ee}:{25+2*ee}], v7, s[48:51], s42 offen")
        else:
            e(f"v_add_u32 v7, 4096, v7")
            e(f"buffer_store_dwordx2 v[{24+2*ee}:{25+2*ee}], v7, s[48:51], s42 offen")
    for rr in range(4):
        b = 8 + 4 * rr
        first = True
        for dw in range(4):
            e(f"v_lshlrev_b32 v44, 16, v{b+dw}")
            e(f"v_and_b32 v45, 0xffff0000, v{b+dw}")
            if first:
                e("v_add_f32 v46, v44, v45")
                e("v_mul_f32 v47, v44, v44")
                first = False
            else:
                e("v_add_f32 v46, v46, v44")
                e("v_add_f32 v46, v46, v45")
                e("v_fmac_f32 v47, v44, v44")
            e("v_fmac_f32 v47, v45, v45")
        wave_reduce(k, 46, "v_add_f32", 44, 60)
        wave_reduce(k, 47, "v_add_f32", 44, 64)
        e(f"v_mov_b32 v{48+2*rr}, v46")
        e(f"v_mov_b32 v{49+2*rr}, v47")
    e(f"""
    v_mov_b32 v56, 0
    v_mov_b32 v57, 0
    v_mov_b32 v58, 0
    v_mov_b32 v59, 0
    v_lshlrev_b32 v6, 5, v5
    s_lshl_b32 s42, s40, 7
    v_cmp_eq_u32 vcc, 0, v1
    s_and_saveexec_b64 s[60:61], vcc
    s_cbranch_execz xt_z
    buffer_store_dwordx4 v[48:51], v6, s[52:55], s42 offen
    buffer_store_dwordx4 v[52:55], v6, s[52:55], s42 offen offset:16
    buffer_store_dwordx4 v[56:59], v6, s[56:59], s42 offen
    buffer_store_dwordx4 v[56:59], v6, s[56:59], s42 offen offset:16
xt_z:
    s_endpgm
    """)
    e("""
prep_w13:
    s_waitcnt lgkmcnt(0)
    """)
    e(f"""
    s_sub_u32 s40, s2, {NK+NX}
    s_lshr_b32 s41, s40, 1
    s_and_b32 s42, s40, 1
    s_cmp_eq_u32 s42, 0
    s_cselect_b32 s44, s20, s22
    s_cselect_b32 s45, s21, s23
    s_mov_b32 s46, {512*1376*2}
    s_mov_b32 s47, 0x20000
    """)
    k.srd(48, 30, OFF_W13P, 43 * 65536)
    e(f"""
    v_and_b32 v2, 15, v0
    v_lshrrev_b32 v3, 4, v0
    s_movk_i32 s43, {8*2752}
    v_mul_lo_u32 v4, v3, s43
    v_lshl_add_u32 v4, v2, 2, v4
    s_lshl_b32 s52, s41, 6
    s_mov_b32 s53, 0x07060302
    s_mov_b32 s54, 0x05040100
    v_lshrrev_b32 v5, 2, v3
    v_lshlrev_b32 v5, 12, v5
    v_lshrrev_b32 v6, 3, v2
    v_lshl_add_u32 v5, v6, 10, v5
    v_and_b32 v6, 3, v3
    v_lshl_add_u32 v5, v6, 8, v5
    v_and_b32 v6, 7, v2
    v_lshl_add_u32 v5, v6, 5, v5
    s_lshl_b32 s55, s41, 16
    s_lshl_b32 s56, s42, 11
    s_add_u32 s55, s55, s56
    """)
    for it in range(4):
        for ee in range(8):
            off = ee * 2752
            e(f"s_add_u32 s57, s52, {it*16*8*2752 + off}")
            e(f"buffer_load_dword v{8+ee}, v4, s[44:47], s57 offen")
        e("s_waitcnt vmcnt(0)")
        for p in range(4):
            e(f"v_perm_b32 v{16+p}, v{9+2*p}, v{8+2*p}, s54")
            e(f"v_perm_b32 v{20+p}, v{9+2*p}, v{8+2*p}, s53")
        e(f"s_add_u32 s57, s55, {it*4*4096}")
        e(f"buffer_store_dwordx4 v[16:19], v5, s[48:51], s57 offen")
        e(f"buffer_store_dwordx4 v[20:23], v5, s[48:51], s57 offen offset:16")
    e("s_endpgm")
    e("""
prep_w2:
    s_waitcnt lgkmcnt(0)
    """)
    k.srd(44, 24, 0, 1376 * 512 * 2)
    k.srd(48, 30, OFF_W2P, 8 * 43 * 4096)
    e(f"""
    s_sub_u32 s40, s2, {NK+NX+NW13}
    v_lshrrev_b32 v5, 6, v0
    v_lshlrev_b32 v4, 12, v5
    v_lshl_add_u32 v4, v1, 2, v4
    s_lshl_b32 s52, s40, 15
    s_mov_b32 s53, 0x07060302
    s_mov_b32 s54, 0x05040100
    """)
    e(f"""
    v_lshrrev_b32 v6, 5, v1
    s_mov_b32 s55, {43*4096}
    v_mul_lo_u32 v6, v6, s55
    v_and_b32 v7, 31, v1
    v_lshlrev_b32 v7, 1, v7
    v_lshrrev_b32 v8, 4, v7
    v_lshl_add_u32 v6, v8, 6, v6
    v_bfe_u32 v8, v7, 2, 2
    v_lshl_add_u32 v6, v8, 10, v6
    v_and_b32 v8, 3, v7
    v_lshl_add_u32 v6, v8, 4, v6
    v_lshl_add_u32 v6, v5, 8, v6
    s_lshl_b32 s56, s40, 12
    """)
    for it in range(4):
        for ee in range(8):
            row = 16 * (ee >> 2) + (ee & 3)
            e(f"s_add_u32 s57, s52, {row*1024 + it*256}")
            e(f"buffer_load_dword v{8+ee}, v4, s[44:47], s57 offen")
        e("s_waitcnt vmcnt(0)")
        for p in range(4):
            e(f"v_perm_b32 v{16+p}, v{9+2*p}, v{8+2*p}, s54")
            e(f"v_perm_b32 v{20+p}, v{9+2*p}, v{8+2*p}, s53")
        e(f"s_add_u32 s57, s56, {it*2*43*4096}")
        e(f"buffer_store_dwordx4 v[16:19], v6, s[48:51], s57 offen")
        e(f"buffer_store_dwordx4 v[20:23], v6, s[48:51], s57 offen offset:16")
    e("""
prep_done:
    s_endpgm
    """)
    return k.text(vgpr=80)

def main():
    launches = [("prep_kernel", 769, 256, 17408)]
    parts = [gen_prep()]
    hdr = ["; generated by work/gen.py"]
    for (n, g, b, l) in launches:
        hdr.append(f"; @launch kernel={n} grid=({g},1,1) block=({b},1,1) lds={l}")
    hdr.append('.amdgcn_target "amdgcn-amd-amdhsa--gfx950"')
    open(f"cdna_kernels/{NAME}.s", "w").write("\n".join(hdr) + "\n" + "\n".join(parts))

if __name__ == "__main__":
    main()
```

```python
import sys
from asmlib import Kern

from gen_common import *
from gen_conv import gen_conv
from gen_t import gen_t
from gen_g import gen_g1, gen_g2
from gen_ffn import gen_ffn, OFF_CNT
def gen_prep():
    k = Kern("prep_kernel")
    e = k.e
    NK, NX, NW13, NW2 = 512, 128, 86, 43
    e(f"s_cmp_ge_u32 s2, {NK+NX+NW13+NW2}")
    e("s_cbranch_scc1 prep_done")
    load_args(k)
    e("v_and_b32 v1, 63, v0")
    e(f"s_cmp_ge_u32 s2, {NK+NX+NW13}")
    e("s_cbranch_scc1 prep_w2")
    e(f"s_cmp_ge_u32 s2, {NK+NX}")
    e("s_cbranch_scc1 prep_w13")
    e(f"s_cmp_ge_u32 s2, {NK}")
    e("s_cbranch_scc1 prep_xt")
    e("s_waitcnt lgkmcnt(0)")
    k.srd(44, 6, 0, 131072); k.srd(48, 8, 0, 131072); k.srd(52, 10, 0, 131072); k.srd(56, 12, 0, 131072)
    e("""
    v_and_b32 v2, 15, v0
    v_lshrrev_b32 v3, 4, v0
    v_lshlrev_b32 v3, 4, v3
    s_lshl_b32 s40, s2, 8
    buffer_load_dwordx4 v[8:11], v3, s[44:47], s40 offen
    buffer_load_dwordx4 v[12:15], v3, s[48:51], s40 offen
    buffer_load_dwordx4 v[16:19], v3, s[52:55], s40 offen
    buffer_load_dwordx4 v[20:23], v3, s[56:59], s40 offen
    s_lshr_b32 s42, s2, 1
    s_lshl_b32 s42, s42, 2
    s_load_dword s41, s[14:15], s42
    s_and_b32 s43, s2, 1
    s_lshl_b32 s43, s43, 4
    s_waitcnt lgkmcnt(0)
    s_lshr_b32 s41, s41, s43
    s_lshl_b32 s41, s41, 16
    v_mov_b32 v4, s41
    """)
    e(f"v_mul_f32 v4, {LOG2E}, v4")
    e("v_exp_f32 v4, v4")
    bf16r(k, 4, 4)
    e("""
    v_and_b32 v24, 7, v2
    v_lshrrev_b32 v25, 3, v2
    v_lshl_add_u32 v26, v25, 7, v24
    v_cvt_f32_u32 v26, v26
    v_and_b32 v24, 3, v2
    v_lshlrev_b32 v24, 1, v24
    v_lshrrev_b32 v25, 2, v2
    v_lshl_add_u32 v24, v25, 7, v24
    v_add_u32 v24, 256, v24
    v_and_b32 v25, 1, v2
    v_lshlrev_b32 v25, 2, v25
    v_lshrrev_b32 v27, 1, v2
    v_lshl_add_u32 v25, v27, 7, v25
    v_cmp_gt_u32 vcc, 8, v2
    v_cndmask_b32 v27, v25, v24, vcc
    v_cvt_f32_u32 v27, v27
    v_lshlrev_b32 v24, 7, v2
    v_add_u32 v24, 1024, v24
    v_min_u32 v24, 2048, v24
    v_cvt_f32_u32 v28, v24
    v_lshlrev_b32 v24, 3, v2
    v_cvt_f32_u32 v29, v24
    """)
    for r in range(12):
        e(f"v_mov_b32 v{32+r}, 0")
    e("s_waitcnt vmcnt(0)")
    for tau in range(8):
        dw = tau >> 1
        def ext(dst, base):
            if tau & 1: e(f"v_and_b32 v{dst}, 0xffff0000, v{base+dw}")
            else: e(f"v_lshlrev_b32 v{dst}, 16, v{base+dw}")
        ext(48, 8); ext(49, 12); ext(50, 16); ext(51, 20)
        e(f"v_mul_f32 v48, {LOG2E}, v48")
        e("v_exp_f32 v48, v48")
        bf16r(k, 48, 48)
        e("v_mul_f32 v48, v48, v4")
        e(f"v_mul_f32 v48, 0xbfb8aa3b, v48")
        e("v_mul_f32 v49, v49, v4")
        e(f"v_mul_f32 v49, {INV2PI}, v49")
        e("v_mul_f32 v50, v50, v4")
        e("v_add_f32 v50, v50, v50")
        e("v_mul_f32 v51, v51, v4")
        e("v_add_f32 v51, v51, v51")
        e("""
        v_mul_f32 v52, v48, v29
        v_mul_f32 v53, v49, v29
        v_exp_f32 v52, v52
        v_fract_f32 v53, v53
        v_cos_f32 v54, v53
        v_sin_f32 v55, v53
        v_mul_f32 v56, v50, v54
        v_fma_f32 v56, -v51, v55, v56
        v_mul_f32 v57, v50, v55
        v_fma_f32 v57, v51, v54, v57
        v_mul_f32 v56, v52, v56
        v_mul_f32 v57, -v52, v57
        """)
        for r in range(3):
            b = 60 + 4 * r
            e(f"""
            v_mul_f32 v{b}, v48, v{26+r}
            v_mul_f32 v{b+1}, v49, v{26+r}
            v_exp_f32 v{b}, v{b}
            v_fract_f32 v{b+1}, v{b+1}
            v_cos_f32 v{b+2}, v{b+1}
            v_sin_f32 v{b+3}, v{b+1}
            v_mul_f32 v{b+2}, v{b}, v{b+2}
            v_mul_f32 v{b+3}, v{b}, v{b+3}
            """)
        for r in range(3):
            b = 60 + 4 * r
            e(f"v_mfma_f32_16x16x4_f32 v[{32+4*r}:{35+4*r}], v{b+2}, v56, v[{32+4*r}:{35+4*r}]")
        for r in range(3):
            b = 60 + 4 * r
            e(f"v_mfma_f32_16x16x4_f32 v[{32+4*r}:{35+4*r}], v{b+3}, v57, v[{32+4*r}:{35+4*r}]")
    e("""
    v_lshrrev_b32 v5, 6, v0
    v_mul_u32_u24 v6, 3072, v5
    v_lshl_add_u32 v6, v1, 4, v6
    """)
    for r in range(3):
        e(f"ds_write_b128 v6, v[{32+4*r}:{35+4*r}] offset:{1024*r}")
    e("""
    s_waitcnt lgkmcnt(0)
    s_barrier
    v_readfirstlane_b32 s40, v5
    s_cmp_eq_u32 s40, 3
    s_cbranch_scc1 kg_tab_done
    v_lshlrev_b32 v6, 4, v0
    ds_read_b128 v[32:35], v6
    ds_read_b128 v[36:39], v6 offset:3072
    ds_read_b128 v[40:43], v6 offset:6144
    ds_read_b128 v[44:47], v6 offset:9216
    v_lshrrev_b32 v7, 4, v1
    s_waitcnt lgkmcnt(0)
    """)
    for q in range(4):
        e(f"v_add_f32 v{32+q}, v{32+q}, v{36+q}")
        e(f"v_add_f32 v{40+q}, v{40+q}, v{44+q}")
        e(f"v_add_f32 v{32+q}, v{32+q}, v{40+q}")
    e("""
    s_cmp_eq_u32 s40, 1
    s_cbranch_scc1 kg_t1
    s_cmp_eq_u32 s40, 2
    s_cbranch_scc1 kg_t2
    v_and_b32 v24, 1, v7
    v_lshlrev_b32 v24, 2, v24
    v_lshrrev_b32 v25, 1, v7
    v_lshl_add_u32 v24, v25, 7, v24
    v_lshl_add_u32 v48, v2, 3, v24
    v_add_u32 v49, 1, v48
    v_add_u32 v50, 2, v48
    v_add_u32 v51, 3, v48
    s_branch kg_tw
kg_t1:
    v_lshlrev_b32 v24, 6, v7
    v_lshl_add_u32 v24, v2, 2, v24
    v_add_u32 v24, 256, v24
    v_lshlrev_b32 v25, 6, v7
    v_lshl_add_u32 v25, v2, 1, v25
    v_add_u32 v25, 256, v25
    v_cmp_gt_u32 vcc, 2, v7
    v_cndmask_b32 v48, v25, v24, vcc
    v_add_u32 v49, 1, v48
    v_add_u32 v24, 2, v24
    v_add_u32 v25, 32, v25
    v_cndmask_b32 v50, v25, v24, vcc
    v_add_u32 v51, 1, v50
    s_branch kg_tw
kg_t2:
    v_lshlrev_b32 v24, 6, v7
    v_add_u32 v24, v2, v24
    v_add_u32 v24, 512, v24
    v_mov_b32 v25, 700
    v_cmp_gt_u32 vcc, 2, v7
    v_cndmask_b32 v48, v25, v24, vcc
    v_add_u32 v49, 16, v24
    v_cndmask_b32 v49, v25, v49, vcc
    v_add_u32 v50, 32, v24
    v_cndmask_b32 v50, v25, v50, vcc
    v_add_u32 v51, 48, v24
    v_cndmask_b32 v51, v25, v51, vcc
    v_mov_b32 v24, 640
    v_cmp_eq_u32 vcc, 32, v1
    v_cndmask_b32 v48, v48, v24, vcc
kg_tw:
    """)
    for q in range(4):
        e(f"v_lshlrev_b32 v{48+q}, 2, v{48+q}")
        e(f"ds_write_b32 v{48+q}, v{32+q} offset:12288")
    e("""
kg_tab_done:
    s_waitcnt lgkmcnt(0)
    s_barrier
    v_lshlrev_b32 v6, 2, v0
    ds_read_b32 v32, v6 offset:12288
    ds_read_b32 v33, v6 offset:13312
    v_min_u32 v7, 128, v0
    v_lshlrev_b32 v7, 2, v7
    ds_read_b32 v34, v7 offset:14336
    s_waitcnt lgkmcnt(0)
    v_max_f32 v32, |v32|, |v33|
    v_max_f32 v32, |v34|, v32
    """)
    wave_reduce(k, 32, "v_max_f32", 33, 60)
    e("""
    v_lshlrev_b32 v6, 2, v5
    ds_write_b32 v6, v32 offset:16384
    s_waitcnt lgkmcnt(0)
    s_barrier
    v_mov_b32 v6, 0
    ds_read_b128 v[32:35], v6 offset:16384
    s_waitcnt lgkmcnt(0)
    v_max_f32 v32, v32, v33
    v_max_f32 v34, v34, v35
    v_max_f32 v32, v32, v34
    v_lshrrev_b32 v32, 23, v32
    v_max_u32 v32, 32, v32
    v_min_u32 v32, 254, v32
    v_sub_u32 v33, 268, v32
    v_lshlrev_b32 v33, 23, v33
    v_subrev_u32 v34, 14, v32
    v_lshlrev_b32 v34, 23, v34
    """)
    e("""
    v_lshlrev_b32 v6, 3, v0
    v_or_b32 v7, 128, v6
    v_ffbh_u32 v7, v7
    v_sub_u32 v7, 24, v7
    v_lshlrev_b32 v8, 1, 1
    v_lshlrev_b32 v8, v7, 1
    v_lshrrev_b32 v8, 1, v8
    v_subrev_u32 v8, 1, v8
    v_lshlrev_b32 v9, 7, v7
    v_cmp_lt_u32 vcc, 0, v7
    """)
    for ee in range(8):
        e(f"""
        v_add_u32 v10, {ee}, v6
        v_lshrrev_b32 v11, v7, v10
        v_and_b32 v11, 1, v11
        v_add_u32 v11, v8, v11
        v_cndmask_b32 v11, 0, v11, vcc
        v_add_u32 v10, v10, v11
        v_lshrrev_b32 v10, v7, v10
        v_add_u32 v10, v9, v10
        v_lshlrev_b32 v10, 2, v10
        ds_read_b32 v{40+ee}, v10 offset:12288
        """)
    e("s_waitcnt lgkmcnt(0)")
    for ee in range(8):
        e(f"v_mul_f32 v{40+ee}, v{40+ee}, v33")
    for p in range(4):
        e(f"v_cvt_pkrtz_f16_f32 v{48+p}, v{40+2*p}, v{41+2*p}") if False else None
        e(f"v_cvt_f16_f32 v{40+2*p}, v{40+2*p}")
        e(f"v_cvt_f16_f32 v{41+2*p}, v{41+2*p}")
        e(f"v_pack_b32_f16 v{48+p}, v{40+2*p}, v{41+2*p}")
    k.srd(44, 30, OFF_K16, 512 * KROW * 2)
    k.srd(48, 30, OFF_KSC, 2048)
    e(f"""
    s_mul_i32 s40, s2, {KROW*2}
    v_lshlrev_b32 v6, 4, v0
    buffer_store_dwordx4 v[48:51], v6, s[44:47], s40 offen offset:128
    v_mov_b32 v52, 0
    v_mov_b32 v53, 0
    v_mov_b32 v54, 0
    v_mov_b32 v55, 0
    v_add_u32 v7, {(2112-64)*2}, v6
    v_cmp_gt_u32 vcc, 8, v0
    v_cndmask_b32 v7, v7, v6, vcc
    v_cmp_gt_u32 vcc, 32, v0
    s_and_saveexec_b64 s[60:61], vcc
    s_cbranch_execz kg_z
    buffer_store_dwordx4 v[52:55], v7, s[44:47], s40 offen
kg_z:
    s_mov_b64 exec, s[60:61]
    v_cmp_eq_u32 vcc, 0, v0
    s_and_saveexec_b64 s[60:61], vcc
    s_cbranch_execz kg_z2
    s_lshl_b32 s41, s2, 2
    v_mov_b32 v7, 0
    buffer_store_dword v34, v7, s[48:51], s41 offen
kg_z2:
    s_endpgm
    """)
    e("""
prep_xt:
    s_waitcnt lgkmcnt(0)
    """)
    k.srd(44, 4, 0, MB2)
    k.srd(48, 30, OFF_XT, MB2)
    k.srd(52, 30, OFF_ST1, 16384)
    k.srd(56, 30, OFF_ST2, 16384)
    e(f"""
    s_sub_u32 s40, s2, {NK}
    v_lshrrev_b32 v5, 6, v0
    s_lshl_b32 s41, s40, 14
    v_lshlrev_b32 v6, 12, v5
    v_lshl_add_u32 v6, v1, 4, v6
    buffer_load_dwordx4 v[8:11], v6, s[44:47], s41 offen
    buffer_load_dwordx4 v[12:15], v6, s[44:47], s41 offen offset:1024
    buffer_load_dwordx4 v[16:19], v6, s[44:47], s41 offen offset:2048
    buffer_load_dwordx4 v[20:23], v6, s[44:47], s41 offen offset:3072
    s_lshl_b32 s42, s40, 5
    v_lshlrev_b32 v7, 15, v1
    v_lshl_add_u32 v7, v5, 3, v7
    s_mov_b32 s43, 0x07060302
    s_mov_b32 s46, 0x05040100
    s_waitcnt vmcnt(0)
    """)
    for ee in range(8):
        dw = ee >> 1
        sel = "s43" if ee & 1 else "s46"
        e(f"v_perm_b32 v{24+2*ee}, v{12+dw}, v{8+dw}, {sel}")
        e(f"v_perm_b32 v{25+2*ee}, v{20+dw}, v{16+dw}, {sel}")
    for ee in range(8):
        if ee < 1:
            e(f"buffer_store_dwordx2 v[{24+2*ee}:{25+2*ee}], v7, s[48:51], s42 offen")
        else:
            e(f"v_add_u32 v7, 4096, v7")
            e(f"buffer_store_dwordx2 v[{24+2*ee}:{25+2*ee}], v7, s[48:51], s42 offen")
    for rr in range(4):
        b = 8 + 4 * rr
        first = True
        for dw in range(4):
            e(f"v_lshlrev_b32 v44, 16, v{b+dw}")
            e(f"v_and_b32 v45, 0xffff0000, v{b+dw}")
            if first:
                e("v_add_f32 v46, v44, v45")
                e("v_mul_f32 v47, v44, v44")
                first = False
            else:
                e("v_add_f32 v46, v46, v44")
                e("v_add_f32 v46, v46, v45")
                e("v_fmac_f32 v47, v44, v44")
            e("v_fmac_f32 v47, v45, v45")
        wave_reduce(k, 46, "v_add_f32", 44, 60)
        wave_reduce(k, 47, "v_add_f32", 44, 64)
        e(f"v_mov_b32 v{48+2*rr}, v46")
        e(f"v_mov_b32 v{49+2*rr}, v47")
    e(f"""
    v_mov_b32 v56, 0
    v_mov_b32 v57, 0
    v_mov_b32 v58, 0
    v_mov_b32 v59, 0
    s_add_u32 s68, s30, {OFF_CNT}
    s_addc_u32 s69, s31, 0
    s_mov_b32 s70, 65536
    s_mov_b32 s71, 0x20000
    v_lshlrev_b32 v6, 1, v0
    s_lshl_b32 s42, s40, 9
    buffer_store_short v56, v6, s[68:71], s42 offen
    v_lshlrev_b32 v6, 5, v5
    s_lshl_b32 s42, s40, 7
    v_cmp_eq_u32 vcc, 0, v1
    s_and_saveexec_b64 s[60:61], vcc
    s_cbranch_execz xt_z
    buffer_store_dwordx4 v[48:51], v6, s[52:55], s42 offen
    buffer_store_dwordx4 v[52:55], v6, s[52:55], s42 offen offset:16
    buffer_store_dwordx4 v[56:59], v6, s[56:59], s42 offen
    buffer_store_dwordx4 v[56:59], v6, s[56:59], s42 offen offset:16
xt_z:
    s_endpgm
    """)
    e("""
prep_w13:
    s_waitcnt lgkmcnt(0)
    """)
    e(f"""
    s_sub_u32 s40, s2, {NK+NX}
    s_lshr_b32 s41, s40, 1
    s_and_b32 s42, s40, 1
    s_cmp_eq_u32 s42, 0
    s_cselect_b32 s44, s20, s22
    s_cselect_b32 s45, s21, s23
    s_mov_b32 s46, {512*1376*2}
    s_mov_b32 s47, 0x20000
    """)
    k.srd(48, 30, OFF_W13P, 43 * 65536)
    e(f"""
    v_and_b32 v2, 15, v0
    v_lshrrev_b32 v3, 4, v0
    s_movk_i32 s43, {8*2752}
    v_mul_lo_u32 v4, v3, s43
    v_lshl_add_u32 v4, v2, 2, v4
    s_lshl_b32 s52, s41, 6
    s_mov_b32 s53, 0x07060302
    s_mov_b32 s54, 0x05040100
    v_lshrrev_b32 v5, 2, v3
    v_lshlrev_b32 v5, 12, v5
    v_lshrrev_b32 v6, 3, v2
    v_lshl_add_u32 v5, v6, 10, v5
    v_and_b32 v6, 3, v3
    v_lshl_add_u32 v5, v6, 8, v5
    v_and_b32 v6, 7, v2
    v_lshl_add_u32 v5, v6, 5, v5
    s_lshl_b32 s55, s41, 16
    s_lshl_b32 s56, s42, 11
    s_add_u32 s55, s55, s56
    """)
    for it in range(4):
        for ee in range(8):
            off = ee * 2752
            e(f"s_add_u32 s57, s52, {it*16*8*2752 + off}")
            e(f"buffer_load_dword v{8+ee}, v4, s[44:47], s57 offen")
        e("s_waitcnt vmcnt(0)")
        for p in range(4):
            e(f"v_perm_b32 v{16+p}, v{9+2*p}, v{8+2*p}, s54")
            e(f"v_perm_b32 v{20+p}, v{9+2*p}, v{8+2*p}, s53")
        e(f"s_add_u32 s57, s55, {it*4*4096}")
        e(f"buffer_store_dwordx4 v[16:19], v5, s[48:51], s57 offen")
        e(f"buffer_store_dwordx4 v[20:23], v5, s[48:51], s57 offen offset:16")
    e("s_endpgm")
    e("""
prep_w2:
    s_waitcnt lgkmcnt(0)
    """)
    k.srd(44, 24, 0, 1376 * 512 * 2)
    k.srd(48, 30, OFF_W2P, 8 * 43 * 4096)
    e(f"""
    s_sub_u32 s40, s2, {NK+NX+NW13}
    v_lshrrev_b32 v5, 6, v0
    v_lshlrev_b32 v4, 12, v5
    v_lshl_add_u32 v4, v1, 2, v4
    s_lshl_b32 s52, s40, 15
    s_mov_b32 s53, 0x07060302
    s_mov_b32 s54, 0x05040100
    """)
    e(f"""
    v_lshrrev_b32 v6, 5, v1
    s_mov_b32 s55, {43*4096}
    v_mul_lo_u32 v6, v6, s55
    v_and_b32 v7, 31, v1
    v_lshlrev_b32 v7, 1, v7
    v_lshrrev_b32 v8, 4, v7
    v_lshl_add_u32 v6, v8, 6, v6
    v_bfe_u32 v8, v7, 2, 2
    v_lshl_add_u32 v6, v8, 10, v6
    v_and_b32 v8, 3, v7
    v_lshl_add_u32 v6, v8, 4, v6
    v_lshl_add_u32 v6, v5, 8, v6
    s_lshl_b32 s56, s40, 12
    """)
    for it in range(4):
        for ee in range(8):
            row = 16 * (ee >> 2) + (ee & 3)
            e(f"s_add_u32 s57, s52, {row*1024 + it*256}")
            e(f"buffer_load_dword v{8+ee}, v4, s[44:47], s57 offen")
        e("s_waitcnt vmcnt(0)")
        for p in range(4):
            e(f"v_perm_b32 v{16+p}, v{9+2*p}, v{8+2*p}, s54")
            e(f"v_perm_b32 v{20+p}, v{9+2*p}, v{8+2*p}, s53")
        e(f"s_add_u32 s57, s56, {it*2*43*4096}")
        e(f"buffer_store_dwordx4 v[16:19], v6, s[48:51], s57 offen")
        e(f"buffer_store_dwordx4 v[20:23], v6, s[48:51], s57 offen offset:16")
    e("""
prep_done:
    s_endpgm
    """)
    return k.text(vgpr=80)

def main():
    launches = [("prep_kernel", 769, 256, 17408), ("conv1_kernel", 512, 256, 44544),
                ("t1_kernel", 256, 256, 9216), ("ffn1_kernel", 256, 256, 131072),
                ("conv2_kernel", 512, 256, 44544), ("t2_kernel", 256, 256, 9216), ("ffn2_kernel", 256, 256, 131072)]
    parts = [gen_prep(), gen_conv("conv1_kernel", OFF_ST1), gen_conv("conv2_kernel", OFF_ST2),
             gen_t("t1_kernel", None, OFF_ST1, OFF_X1), gen_t("t2_kernel", OFF_X2, OFF_ST2, OFF_X3),
             gen_ffn("ffn1_kernel", 0), gen_ffn("ffn2_kernel", 1)]
    hdr = ["; generated by work/gen.py"]
    for (n, g, b, l) in launches:
        hdr.append(f"; @launch kernel={n} grid=({g},1,1) block=({b},1,1) lds={l}")
    hdr.append('.amdgcn_target "amdgcn-amd-amdhsa--gfx950"')
    open(f"cdna_kernels/{NAME}.s", "w").write("\n".join(hdr) + "\n" + "\n".join(parts))

if __name__ == "__main__":
    main()
```

```python
NAME = "interleave_layers__ssm_conv_s4d__glu_gated_swiglu__prompt"
KROW = 2304
OFF_K16  = 0x0000000
OFF_KSC  = 0x0240000
OFF_ST1  = 0x0241000
OFF_ST2  = 0x0245000
OFF_XT   = 0x0250000
OFF_YT   = 0x0450000
OFF_X1   = 0x0650000
OFF_X2   = 0x0850000
OFF_X3   = 0x0A50000
OFF_AP   = 0x0C50000
OFF_HP   = 0x0E50000
OFF_W13P = 0x13B0000
OFF_W2P  = 0x1660000
MB2 = 0x200000
LOG2E = "0x3fb8aa3b"
INV2PI = "0x3e22f983"

def load_args(k):
    k.e("""
    s_load_dwordx16 s[4:19], s[0:1], 0
    s_load_dwordx8 s[20:27], s[0:1], 64
    s_load_dwordx4 s[28:31], s[0:1], 96
    """)

def bf16r(k, dst, src, tmp=None):
    t = tmp if tmp is not None else dst
    k.e(f"v_cvt_pk_bf16_f32 v{t}, v{src}, v{src}")
    k.e(f"v_lshlrev_b32 v{dst}, 16, v{t}")

def wave_reduce(k, v, op, t, s0):
    for ctrl in ("quad_perm:[1,0,3,2]", "quad_perm:[2,3,0,1]", "row_half_mirror", "row_mirror"):
        k.e(f"{op}_dpp v{v}, v{v}, v{v} {ctrl} row_mask:0xf bank_mask:0xf")
    for j in range(4):
        k.e(f"v_readlane_b32 s{s0+j}, v{v}, {16*j}")
    k.e(f"v_mov_b32 v{v}, s{s0}")
    for j in range(1, 4):
        k.e(f"{op} v{v}, s{s0+j}, v{v}")
```

```python
from asmlib import Kern
from gen_common import *

def ln_params(k, vs, vq, vm, vsd, vr, t):
    e = k.e
    e(f"v_mul_f32 v{t}, 0x3b000000, v{vs}")
    e(f"v_mul_f32 v{vq}, 0x3b000000, v{vq}")
    e(f"v_fma_f32 v{vq}, -v{t}, v{t}, v{vq}")
    e(f"v_max_f32 v{vq}, 0, v{vq}")
    bf16r(k, vm, t)
    bf16r(k, vq, vq)
    e(f"v_add_f32 v{vq}, 0x3727c5ac, v{vq}")
    bf16r(k, vq, vq)
    e(f"v_sqrt_f32 v{vq}, v{vq}")
    bf16r(k, vsd, vq)
    e(f"v_rcp_f32 v{vr}, v{vsd}")

def ln_apply(k, vx, vm, vsd, vr, t1, t2):
    e = k.e
    e(f"v_sub_f32 v{vx}, v{vx}, v{vm}")
    bf16r(k, vx, vx)
    e(f"v_mul_f32 v{t1}, v{vx}, v{vr}")
    e(f"v_fma_f32 v{t2}, -v{t1}, v{vsd}, v{vx}")
    e(f"v_fma_f32 v{vx}, v{t2}, v{vr}, v{t1}")
    bf16r(k, vx, vx)

CS = 4416
URB = 8 * CS

def gen_conv(name, off_st):
    k = Kern(name)
    e = k.e
    e("s_cmp_ge_u32 s2, 512")
    e(f"s_cbranch_scc1 {name}_done")
    load_args(k)
    e("v_and_b32 v1, 63, v0")
    e("v_lshrrev_b32 v5, 6, v0")
    e("s_waitcnt lgkmcnt(0)")
    k.srd(44, 30, OFF_K16, 512 * KROW * 2)
    k.srd(48, 30, OFF_XT, MB2)
    k.srd(52, 30, off_st, 16384)
    k.srd(56, 30, OFF_YT, MB2)
    e(f"""
    s_mul_i32 s40, s2, {KROW*2}
    s_lshl_b32 s41, s2, 12
    v_lshlrev_b32 v6, 4, v0
    buffer_load_dwordx4 v[8:11], v6, s[44:47], s40 offen
    buffer_load_dwordx4 v[12:15], v6, s[44:47], s40 offen offset:16
    v_add_u32 v7, 16, v6
    buffer_load_dwordx4 v[16:19], v7, s[44:47], s40 offen offset:4080
    v_add_u32 v7, 32, v6
    buffer_load_dwordx4 v[20:23], v7, s[44:47], s40 offen offset:4080
    buffer_load_dwordx4 v[24:27], v6, s[48:51], s41 offen
    v_lshlrev_b32 v7, 6, v0
    buffer_load_dwordx4 v[28:31], v7, s[52:55], 0 offen
    buffer_load_dwordx4 v[32:35], v7, s[52:55], 0 offen offset:16
    buffer_load_dwordx4 v[36:39], v7, s[52:55], 0 offen offset:32
    buffer_load_dwordx4 v[40:43], v7, s[52:55], 0 offen offset:48
    s_add_u32 s60, s30, {OFF_KSC}
    s_addc_u32 s61, s31, 0
    s_lshl_b32 s42, s2, 2
    s_load_dword s62, s[60:61], s42
    """)
    e(f"""
    v_mov_b32 v44, 0
    v_mov_b32 v45, 0
    v_mov_b32 v46, 0
    v_mov_b32 v47, 0
    ds_write_b128 v6, v[44:47] offset:{URB + 4608}
    v_cmp_gt_u32 vcc, 32, v0
    s_and_saveexec_b64 s[64:65], vcc
    ds_write_b128 v6, v[44:47] offset:{URB + 4608 + 4096}
    s_mov_b64 exec, s[64:65]
    """)
    def copies(b, extra):
        for j in range(7):
            e(f"v_alignbit_b32 v{48+j}, v{b+j+1}, v{b+j}, 16")
        for c in range(8):
            sh = c + 1
            if sh % 2 == 0:
                src = b + sh // 2
                if src % 2 == 0:
                    e(f"ds_write_b128 v6, v[{src}:{src+3}] offset:{c*CS + extra}")
                else:
                    for q in range(4): e(f"v_mov_b32 v{56+q}, v{src+q}")
                    e(f"ds_write_b128 v6, v[56:59] offset:{c*CS + extra}")
            else:
                src = 48 + (sh - 1) // 2
                if src % 2 == 0:
                    e(f"ds_write_b128 v6, v[{src}:{src+3}] offset:{c*CS + extra}")
                else:
                    for q in range(4): e(f"v_mov_b32 v{60+q}, v{src+q}")
                    e(f"ds_write_b128 v6, v[60:63] offset:{c*CS + extra}")
    e("s_waitcnt vmcnt(7)")
    copies(8, 0)
    e("s_waitcnt vmcnt(5)")
    e("v_cmp_gt_u32 vcc, 8, v0")
    e("s_and_saveexec_b64 s[64:65], vcc")
    e(f"s_cbranch_execz {name}_c2")
    copies(16, 4096)
    e(f"{name}_c2:")
    e("s_mov_b64 exec, s[64:65]")
    e("s_waitcnt vmcnt(0)")
    for ee in range(8):
        dw = ee >> 1
        if ee & 1: e(f"v_and_b32 v{64+ee}, 0xffff0000, v{24+dw}")
        else: e(f"v_lshlrev_b32 v{64+ee}, 16, v{24+dw}")
        ln_params(k, 28 + 2 * ee, 29 + 2 * ee, 72, 73, 74, 75)
        ln_apply(k, 64 + ee, 72, 73, 74, 75, 76)
        e(f"v_cvt_f16_f32 v{64+ee}, v{64+ee}")
    for p in range(4):
        e(f"v_pack_b32_f16 v{80+p}, v{64+7-2*p}, v{64+6-2*p}")
    e(f"""
    v_lshlrev_b32 v7, 3, v0
    v_sub_u32 v7, 2040, v7
    v_lshrrev_b32 v84, 6, v7
    v_mul_u32_u24 v84, 144, v84
    v_and_b32 v7, 63, v7
    v_lshl_add_u32 v7, v7, 1, v84
    ds_write_b128 v7, v[80:83] offset:{URB}
    """)
    e(f"""
    v_and_b32 v2, 31, v1
    v_lshrrev_b32 v3, 5, v1
    v_and_b32 v7, 7, v2
    v_mul_u32_u24 v90, {CS}, v7
    v_lshrrev_b32 v7, 3, v2
    v_add_u32 v7, v7, v3
    v_lshl_add_u32 v90, v7, 4, v90
    v_lshl_add_u32 v90, v5, 10, v90
    v_sub_u32 v7, 31, v2
    v_lshl_add_u32 v7, v5, 3, v7
    v_mul_u32_u24 v91, 144, v7
    v_lshl_add_u32 v91, v3, 4, v91
    v_add_u32 v91, {URB}, v91
    """)
    for r in range(32):
        e(f"v_mov_b32 v{128+r}, 0")
    e("s_waitcnt lgkmcnt(0)")
    e("s_barrier")
    F = lambda q: 96 + 4 * (q % 4)
    B = lambda s: 112 + 4 * (s % 3)
    def rdF(q): e(f"ds_read_b128 v[{F(q)}:{F(q)+3}], v90 offset:{32*q}")
    def rdB(s): e(f"ds_read_b128 v[{B(s)}:{B(s)+3}], v91 offset:{144*(s>>2) + 32*(s&3)}")
    rdF(0); rdF(1); rdF(2); rdB(0)
    for s in range(32):
        if s < 31:
            rdF(s + 3); rdB(s + 1)
            e("s_waitcnt lgkmcnt(2)")
        else:
            e("s_waitcnt lgkmcnt(0)")
        e(f"v_mfma_f32_32x32x16_f16 v[128:143], v[{F(s)}:{F(s)+3}], v[{B(s)}:{B(s)+3}], v[128:143]")
        e(f"v_mfma_f32_32x32x16_f16 v[144:159], v[{F(s+2)}:{F(s+2)+3}], v[{B(s)}:{B(s)+3}], v[144:159]")
    e("s_barrier")
    e("""
    v_lshlrev_b32 v7, 13, v5
    v_lshl_add_u32 v7, v1, 4, v7
    """)
    for ta in range(8):
        e(f"ds_write_b128 v7, v[{128+4*ta}:{131+4*ta}] offset:{1024*ta}")
    e("""
    s_waitcnt lgkmcnt(0)
    s_barrier
    v_lshlrev_b32 v7, 11, v5
    v_lshl_add_u32 v7, v1, 4, v7
    """)
    for it in range(2):
        for p in range(4):
            e(f"ds_read_b128 v[{8+16*it+4*p}:{11+16*it+4*p}], v7 offset:{8192*p + 1024*it}")
    e("s_waitcnt lgkmcnt(0)")
    for it in range(2):
        b = 8 + 16 * it
        for q in range(4):
            e(f"v_add_f32 v{b+q}, v{b+q}, v{b+4+q}")
            e(f"v_add_f32 v{b+8+q}, v{b+8+q}, v{b+12+q}")
            e(f"v_add_f32 v{b+q}, v{b+q}, v{b+8+q}")
            e(f"v_mul_f32 v{b+q}, s62, v{b+q}")
        e(f"v_cvt_pk_bf16_f32 v{44+2*it}, v{b}, v{b+1}")
        e(f"v_cvt_pk_bf16_f32 v{45+2*it}, v{b+2}, v{b+3}")
    e("""
    v_lshlrev_b32 v7, 3, v2
    v_lshl_add_u32 v7, v5, 1, v7
    v_lshlrev_b32 v7, 13, v7
    v_lshl_add_u32 v7, v3, 3, v7
    s_lshl_b32 s42, s2, 4
    buffer_store_dwordx2 v[44:45], v7, s[56:59], s42 offen
    v_add_u32 v7, 8192, v7
    buffer_store_dwordx2 v[46:47], v7, s[56:59], s42 offen
    """)
    e(f"{name}_done:")
    e("s_endpgm")
    return k.text(vgpr=160)
```

```python
from asmlib import Kern
from gen_common import *
from gen_conv import ln_params, ln_apply, CS, URB
from gen_ffn import OFF_CNT

NK, NX, NW13, NW2 = 512, 128, 86, 43
KPL = 44544

def kgen(k):
    e = k.e
    k.srd(44, 6, 0, 131072); k.srd(48, 8, 0, 131072); k.srd(52, 10, 0, 131072); k.srd(56, 12, 0, 131072)
    e("""
    v_and_b32 v2, 15, v0
    v_lshrrev_b32 v3, 4, v0
    v_lshlrev_b32 v3, 4, v3
    s_lshl_b32 s40, s2, 8
    buffer_load_dwordx4 v[8:11], v3, s[44:47], s40 offen
    buffer_load_dwordx4 v[12:15], v3, s[48:51], s40 offen
    buffer_load_dwordx4 v[16:19], v3, s[52:55], s40 offen
    buffer_load_dwordx4 v[20:23], v3, s[56:59], s40 offen
    s_lshr_b32 s42, s2, 1
    s_lshl_b32 s42, s42, 2
    s_load_dword s41, s[14:15], s42
    s_and_b32 s43, s2, 1
    s_lshl_b32 s43, s43, 4
    s_waitcnt lgkmcnt(0)
    s_lshr_b32 s41, s41, s43
    s_lshl_b32 s41, s41, 16
    v_mov_b32 v4, s41
    """)
    e(f"v_mul_f32 v4, {LOG2E}, v4")
    e("v_exp_f32 v4, v4")
    bf16r(k, 4, 4)
    e("""
    v_and_b32 v24, 7, v2
    v_lshrrev_b32 v25, 3, v2
    v_lshl_add_u32 v26, v25, 7, v24
    v_cvt_f32_u32 v26, v26
    v_and_b32 v24, 3, v2
    v_lshlrev_b32 v24, 1, v24
    v_lshrrev_b32 v25, 2, v2
    v_lshl_add_u32 v24, v25, 7, v24
    v_add_u32 v24, 256, v24
    v_and_b32 v25, 1, v2
    v_lshlrev_b32 v25, 2, v25
    v_lshrrev_b32 v27, 1, v2
    v_lshl_add_u32 v25, v27, 7, v25
    v_cmp_gt_u32 vcc, 8, v2
    v_cndmask_b32 v27, v25, v24, vcc
    v_cvt_f32_u32 v27, v27
    v_lshlrev_b32 v24, 7, v2
    v_add_u32 v24, 1024, v24
    v_min_u32 v24, 2048, v24
    v_cvt_f32_u32 v28, v24
    v_lshlrev_b32 v24, 3, v2
    v_cvt_f32_u32 v29, v24
    """)
    for r in range(12):
        e(f"v_mov_b32 v{32+r}, 0")
    e("s_waitcnt vmcnt(0)")
    for tau in range(8):
        dw = tau >> 1
        def ext(dst, base):
            if tau & 1: e(f"v_and_b32 v{dst}, 0xffff0000, v{base+dw}")
            else: e(f"v_lshlrev_b32 v{dst}, 16, v{base+dw}")
        ext(48, 8); ext(49, 12); ext(50, 16); ext(51, 20)
        e(f"v_mul_f32 v48, {LOG2E}, v48")
        e("v_exp_f32 v48, v48")
        bf16r(k, 48, 48)
        e("v_mul_f32 v48, v48, v4")
        e(f"v_mul_f32 v48, 0xbfb8aa3b, v48")
        e("v_mul_f32 v49, v49, v4")
        e(f"v_mul_f32 v49, {INV2PI}, v49")
        e("v_mul_f32 v50, v50, v4")
        e("v_add_f32 v50, v50, v50")
        e("v_mul_f32 v51, v51, v4")
        e("v_add_f32 v51, v51, v51")
        e("""
        v_mul_f32 v52, v48, v29
        v_mul_f32 v53, v49, v29
        v_exp_f32 v52, v52
        v_fract_f32 v53, v53
        v_cos_f32 v54, v53
        v_sin_f32 v55, v53
        v_mul_f32 v56, v50, v54
        v_fma_f32 v56, -v51, v55, v56
        v_mul_f32 v57, v50, v55
        v_fma_f32 v57, v51, v54, v57
        v_mul_f32 v56, v52, v56
        v_mul_f32 v57, -v52, v57
        """)
        for r in range(3):
            b = 60 + 4 * r
            e(f"""
            v_mul_f32 v{b}, v48, v{26+r}
            v_mul_f32 v{b+1}, v49, v{26+r}
            v_exp_f32 v{b}, v{b}
            v_fract_f32 v{b+1}, v{b+1}
            v_cos_f32 v{b+2}, v{b+1}
            v_sin_f32 v{b+3}, v{b+1}
            v_mul_f32 v{b+2}, v{b}, v{b+2}
            v_mul_f32 v{b+3}, v{b}, v{b+3}
            """)
        for r in range(3):
            b = 60 + 4 * r
            e(f"v_mfma_f32_16x16x4_f32 v[{32+4*r}:{35+4*r}], v{b+2}, v56, v[{32+4*r}:{35+4*r}]")
        for r in range(3):
            b = 60 + 4 * r
            e(f"v_mfma_f32_16x16x4_f32 v[{32+4*r}:{35+4*r}], v{b+3}, v57, v[{32+4*r}:{35+4*r}]")
    e("""
    v_mul_u32_u24 v6, 3072, v5
    v_lshl_add_u32 v6, v1, 4, v6
    """)
    for r in range(3):
        e(f"ds_write_b128 v6, v[{32+4*r}:{35+4*r}] offset:{1024*r}")
    e("""
    s_waitcnt lgkmcnt(0)
    s_barrier
    v_readfirstlane_b32 s40, v5
    s_cmp_eq_u32 s40, 3
    s_cbranch_scc1 kg_tab_done
    v_lshlrev_b32 v6, 4, v0
    ds_read_b128 v[32:35], v6
    ds_read_b128 v[36:39], v6 offset:3072
    ds_read_b128 v[40:43], v6 offset:6144
    ds_read_b128 v[44:47], v6 offset:9216
    v_lshrrev_b32 v7, 4, v1
    s_waitcnt lgkmcnt(0)
    """)
    for q in range(4):
        e(f"v_add_f32 v{32+q}, v{32+q}, v{36+q}")
        e(f"v_add_f32 v{40+q}, v{40+q}, v{44+q}")
        e(f"v_add_f32 v{32+q}, v{32+q}, v{40+q}")
    e("""
    s_cmp_eq_u32 s40, 1
    s_cbranch_scc1 kg_t1
    s_cmp_eq_u32 s40, 2
    s_cbranch_scc1 kg_t2
    v_and_b32 v24, 1, v7
    v_lshlrev_b32 v24, 2, v24
    v_lshrrev_b32 v25, 1, v7
    v_lshl_add_u32 v24, v25, 7, v24
    v_lshl_add_u32 v48, v2, 3, v24
    v_add_u32 v49, 1, v48
    v_add_u32 v50, 2, v48
    v_add_u32 v51, 3, v48
    s_branch kg_tw
kg_t1:
    v_lshlrev_b32 v24, 6, v7
    v_lshl_add_u32 v24, v2, 2, v24
    v_add_u32 v24, 256, v24
    v_lshlrev_b32 v25, 6, v7
    v_lshl_add_u32 v25, v2, 1, v25
    v_add_u32 v25, 256, v25
    v_cmp_gt_u32 vcc, 2, v7
    v_cndmask_b32 v48, v25, v24, vcc
    v_add_u32 v49, 1, v48
    v_add_u32 v24, 2, v24
    v_add_u32 v25, 32, v25
    v_cndmask_b32 v50, v25, v24, vcc
    v_add_u32 v51, 1, v50
    s_branch kg_tw
kg_t2:
    v_lshlrev_b32 v24, 6, v7
    v_add_u32 v24, v2, v24
    v_add_u32 v24, 512, v24
    v_mov_b32 v25, 700
    v_cmp_gt_u32 vcc, 2, v7
    v_cndmask_b32 v48, v25, v24, vcc
    v_add_u32 v49, 16, v24
    v_cndmask_b32 v49, v25, v49, vcc
    v_add_u32 v50, 32, v24
    v_cndmask_b32 v50, v25, v50, vcc
    v_add_u32 v51, 48, v24
    v_cndmask_b32 v51, v25, v51, vcc
    v_mov_b32 v24, 640
    v_cmp_eq_u32 vcc, 32, v1
    v_cndmask_b32 v48, v48, v24, vcc
kg_tw:
    """)
    for q in range(4):
        e(f"v_lshlrev_b32 v{48+q}, 2, v{48+q}")
        e(f"ds_write_b32 v{48+q}, v{32+q} offset:12288")
    e("""
kg_tab_done:
    s_waitcnt lgkmcnt(0)
    s_barrier
    v_lshlrev_b32 v6, 2, v0
    ds_read_b32 v32, v6 offset:12288
    ds_read_b32 v33, v6 offset:13312
    v_min_u32 v7, 128, v0
    v_lshlrev_b32 v7, 2, v7
    ds_read_b32 v34, v7 offset:14336
    s_waitcnt lgkmcnt(0)
    v_max_f32 v32, |v32|, |v33|
    v_max_f32 v32, |v34|, v32
    """)
    wave_reduce(k, 32, "v_max_f32", 33, 60)
    e("""
    v_lshlrev_b32 v6, 2, v5
    ds_write_b32 v6, v32 offset:16384
    s_waitcnt lgkmcnt(0)
    s_barrier
    v_mov_b32 v6, 0
    ds_read_b128 v[32:35], v6 offset:16384
    s_waitcnt lgkmcnt(0)
    v_max_f32 v32, v32, v33
    v_max_f32 v34, v34, v35
    v_max_f32 v32, v32, v34
    v_lshrrev_b32 v32, 23, v32
    v_max_u32 v32, 32, v32
    v_min_u32 v32, 254, v32
    v_sub_u32 v33, 268, v32
    v_lshlrev_b32 v33, 23, v33
    v_subrev_u32 v34, 14, v32
    v_lshlrev_b32 v34, 23, v34
    v_lshlrev_b32 v6, 3, v0
    v_or_b32 v7, 128, v6
    v_ffbh_u32 v7, v7
    v_sub_u32 v7, 24, v7
    v_lshlrev_b32 v8, v7, 1
    v_lshrrev_b32 v8, 1, v8
    v_subrev_u32 v8, 1, v8
    v_lshlrev_b32 v9, 7, v7
    v_cmp_lt_u32 vcc, 0, v7
    v_readfirstlane_b32 s62, v34
    """)
    for ee in range(8):
        e(f"""
        v_add_u32 v10, {ee}, v6
        v_lshrrev_b32 v11, v7, v10
        v_and_b32 v11, 1, v11
        v_add_u32 v11, v8, v11
        v_cndmask_b32 v11, 0, v11, vcc
        v_add_u32 v10, v10, v11
        v_lshrrev_b32 v10, v7, v10
        v_add_u32 v10, v9, v10
        v_lshlrev_b32 v10, 2, v10
        ds_read_b32 v{40+ee}, v10 offset:12288
        """)
    e("s_waitcnt lgkmcnt(0)")
    for ee in range(8):
        e(f"v_mul_f32 v{40+ee}, v{40+ee}, v33")
    for p in range(4):
        e(f"v_cvt_f16_f32 v{40+2*p}, v{40+2*p}")
        e(f"v_cvt_f16_f32 v{41+2*p}, v{41+2*p}")
        e(f"v_pack_b32_f16 v{48+p}, v{40+2*p}, v{41+2*p}")
    k.srd(44, 30, OFF_K16, 512 * KROW * 2)
    k.srd(48, 30, OFF_KSC, 2048)
    e(f"""
    s_mul_i32 s40, s2, {KROW*2}
    v_lshlrev_b32 v6, 4, v0
    buffer_store_dwordx4 v[48:51], v6, s[44:47], s40 offen offset:128
    ds_write_b128 v6, v[48:51] offset:{KPL+128}
    v_mov_b32 v52, 0
    v_mov_b32 v53, 0
    v_mov_b32 v54, 0
    v_mov_b32 v55, 0
    v_add_u32 v7, {(2112-64)*2}, v6
    v_cmp_gt_u32 vcc, 8, v0
    v_cndmask_b32 v7, v7, v6, vcc
    v_cmp_gt_u32 vcc, 32, v0
    s_and_saveexec_b64 s[60:61], vcc
    buffer_store_dwordx4 v[52:55], v7, s[44:47], s40 offen
    ds_write_b128 v7, v[52:55] offset:{KPL}
    s_mov_b64 exec, s[60:61]
    v_cmp_eq_u32 vcc, 0, v0
    s_and_saveexec_b64 s[60:61], vcc
    s_lshl_b32 s41, s2, 2
    v_mov_b32 v7, 0
    buffer_store_dword v34, v7, s[48:51], s41 offen
    s_mov_b64 exec, s[60:61]
    s_waitcnt lgkmcnt(0)
    s_barrier
    """)

def role_xt(k):
    e = k.e
    k.srd(44, 4, 0, MB2)
    k.srd(48, 30, OFF_XT, MB2)
    k.srd(52, 30, OFF_ST1, 16384)
    k.srd(56, 30, OFF_ST2, 16384)
    k.srd(68, 30, OFF_CNT, 65536)
    e(f"""
    s_sub_u32 s40, s2, {NK}
    v_lshrrev_b32 v5, 6, v0
    s_lshl_b32 s41, s40, 14
    v_lshlrev_b32 v6, 12, v5
    v_lshl_add_u32 v6, v1, 4, v6
    buffer_load_dwordx4 v[8:11], v6, s[44:47], s41 offen
    buffer_load_dwordx4 v[12:15], v6, s[44:47], s41 offen offset:1024
    buffer_load_dwordx4 v[16:19], v6, s[44:47], s41 offen offset:2048
    buffer_load_dwordx4 v[20:23], v6, s[44:47], s41 offen offset:3072
    s_lshl_b32 s42, s40, 5
    v_lshlrev_b32 v7, 15, v1
    v_lshl_add_u32 v7, v5, 3, v7
    s_mov_b32 s43, 0x07060302
    s_mov_b32 s72, 0x05040100
    v_mov_b32 v56, 0
    v_mov_b32 v57, 0
    v_mov_b32 v58, 0
    v_mov_b32 v59, 0
    v_lshlrev_b32 v60, 1, v0
    s_lshl_b32 s73, s40, 9
    buffer_store_short v56, v60, s[68:71], s73 offen sc0 sc1
    s_waitcnt vmcnt(1)
    """)
    for ee in range(8):
        dw = ee >> 1
        sel = "s43" if ee & 1 else "s72"
        e(f"v_perm_b32 v{24+2*ee}, v{12+dw}, v{8+dw}, {sel}")
        e(f"v_perm_b32 v{25+2*ee}, v{20+dw}, v{16+dw}, {sel}")
    for ee in range(8):
        if ee: e(f"v_add_u32 v7, 4096, v7")
        e(f"buffer_store_dwordx2 v[{24+2*ee}:{25+2*ee}], v7, s[48:51], s42 offen sc0 sc1")
    for rr in range(4):
        b = 8 + 4 * rr
        first = True
        for dw in range(4):
            e(f"v_lshlrev_b32 v44, 16, v{b+dw}")
            e(f"v_and_b32 v45, 0xffff0000, v{b+dw}")
            if first:
                e("v_add_f32 v46, v44, v45")
                e("v_mul_f32 v47, v44, v44")
                first = False
            else:
                e("v_add_f32 v46, v46, v44")
                e("v_add_f32 v46, v46, v45")
                e("v_fmac_f32 v47, v44, v44")
            e("v_fmac_f32 v47, v45, v45")
        wave_reduce(k, 46, "v_add_f32", 44, 60)
        wave_reduce(k, 47, "v_add_f32", 44, 64)
        e(f"v_mov_b32 v{48+2*rr}, v46")
        e(f"v_mov_b32 v{49+2*rr}, v47")
    e(f"""
    v_lshlrev_b32 v6, 5, v5
    s_lshl_b32 s42, s40, 7
    v_cmp_eq_u32 vcc, 0, v1
    s_and_saveexec_b64 s[60:61], vcc
    buffer_store_dwordx4 v[48:51], v6, s[52:55], s42 offen sc0 sc1
    buffer_store_dwordx4 v[52:55], v6, s[52:55], s42 offen offset:16 sc0 sc1
    buffer_store_dwordx4 v[56:59], v6, s[56:59], s42 offen
    buffer_store_dwordx4 v[56:59], v6, s[56:59], s42 offen offset:16
    s_mov_b64 exec, s[60:61]
    s_waitcnt vmcnt(0)
    s_barrier
    """)
    k.srd(72, 28, 0, 256)
    e("""
    v_cmp_eq_u32 vcc, 0, v0
    s_and_saveexec_b64 s[60:61], vcc
    s_cbranch_execz xt_z
    v_mov_b32 v6, 0
    v_mov_b32 v7, 1
    buffer_atomic_add v7, v6, s[72:75], 0 offen
xt_z:
    s_endpgm
    """)

def role_w13(k):
    e = k.e
    e(f"""
    s_sub_u32 s40, s2, {NK+NX}
    s_lshr_b32 s41, s40, 1
    s_and_b32 s42, s40, 1
    s_cmp_eq_u32 s42, 0
    s_cselect_b32 s44, s20, s22
    s_cselect_b32 s45, s21, s23
    s_mov_b32 s46, {512*1376*2}
    s_mov_b32 s47, 0x20000
    """)
    k.srd(48, 30, OFF_W13P, 43 * 65536)
    e(f"""
    v_and_b32 v2, 15, v0
    v_lshrrev_b32 v3, 4, v0
    s_movk_i32 s43, {8*2752}
    v_mul_lo_u32 v4, v3, s43
    v_lshl_add_u32 v4, v2, 2, v4
    s_lshl_b32 s52, s41, 6
    s_mov_b32 s53, 0x07060302
    s_mov_b32 s54, 0x05040100
    v_lshrrev_b32 v5, 2, v3
    v_lshlrev_b32 v5, 12, v5
    v_lshrrev_b32 v6, 3, v2
    v_lshl_add_u32 v5, v6, 10, v5
    v_and_b32 v6, 3, v3
    v_lshl_add_u32 v5, v6, 8, v5
    v_and_b32 v6, 7, v2
    v_lshl_add_u32 v5, v6, 5, v5
    s_lshl_b32 s55, s41, 16
    s_lshl_b32 s56, s42, 11
    s_add_u32 s55, s55, s56
    """)
    for it in range(4):
        for ee in range(8):
            e(f"s_add_u32 s57, s52, {it*16*8*2752 + ee*2752}")
            e(f"buffer_load_dword v{8+16*it+ee}, v4, s[44:47], s57 offen")
    for it in range(4):
        b = 8 + 16 * it
        e(f"s_waitcnt vmcnt({8*(3-it) + 2*it})")
        for p in range(4):
            e(f"v_perm_b32 v{72+p}, v{b+1+2*p}, v{b+2*p}, s54")
            e(f"v_perm_b32 v{76+p}, v{b+1+2*p}, v{b+2*p}, s53")
        e(f"s_add_u32 s57, s55, {it*4*4096}")
        e(f"buffer_store_dwordx4 v[72:75], v5, s[48:51], s57 offen")
        e(f"buffer_store_dwordx4 v[76:79], v5, s[48:51], s57 offen offset:16")
        e("s_nop 1")
    e("s_endpgm")

def role_w2(k):
    e = k.e
    k.srd(44, 24, 0, 1376 * 512 * 2)
    k.srd(48, 30, OFF_W2P, 8 * 43 * 4096)
    e(f"""
    s_sub_u32 s40, s2, {NK+NX+NW13}
    v_lshrrev_b32 v5, 6, v0
    v_lshlrev_b32 v4, 12, v5
    v_lshl_add_u32 v4, v1, 2, v4
    s_lshl_b32 s52, s40, 15
    s_mov_b32 s53, 0x07060302
    s_mov_b32 s54, 0x05040100
    v_lshrrev_b32 v6, 5, v1
    s_mov_b32 s55, {43*4096}
    v_mul_lo_u32 v6, v6, s55
    v_and_b32 v7, 31, v1
    v_lshlrev_b32 v7, 1, v7
    v_lshrrev_b32 v8, 4, v7
    v_lshl_add_u32 v6, v8, 6, v6
    v_bfe_u32 v8, v7, 2, 2
    v_lshl_add_u32 v6, v8, 10, v6
    v_and_b32 v8, 3, v7
    v_lshl_add_u32 v6, v8, 4, v6
    v_lshl_add_u32 v6, v5, 8, v6
    s_lshl_b32 s56, s40, 12
    """)
    for it in range(4):
        for ee in range(8):
            row = 16 * (ee >> 2) + (ee & 3)
            e(f"s_add_u32 s57, s52, {row*1024 + it*256}")
            e(f"buffer_load_dword v{8+16*it+ee}, v4, s[44:47], s57 offen")
    for it in range(4):
        b = 8 + 16 * it
        e(f"s_waitcnt vmcnt({8*(3-it) + 2*it})")
        for p in range(4):
            e(f"v_perm_b32 v{72+p}, v{b+1+2*p}, v{b+2*p}, s54")
            e(f"v_perm_b32 v{76+p}, v{b+1+2*p}, v{b+2*p}, s53")
        e(f"s_add_u32 s57, s56, {it*2*43*4096}")
        e(f"buffer_store_dwordx4 v[72:75], v6, s[48:51], s57 offen")
        e(f"buffer_store_dwordx4 v[76:79], v6, s[48:51], s57 offen offset:16")
        e("s_nop 1")
    e("s_endpgm")

def gen_convt(name, layer, fused=False):
    first = fused
    l0 = layer == 0
    off_st = OFF_ST1 if l0 else OFF_ST2
    off_xout = OFF_X1 if l0 else OFF_X3
    SC = " sc0 sc1" if first else ""
    k = Kern(name)
    e = k.e
    STAMP = False
    def stamp(i):
        if not STAMP: return
        e("s_memrealtime s[96:97]")
        e("s_waitcnt lgkmcnt(0)")
        e(f"v_mov_b32 v{124+i if i < 4 else (95 if i == 4 else 102+i)}, s96")
    total = NK + NX + NW13 + NW2 if first else NK
    e(f"s_cmp_ge_u32 s2, {total}")
    e(f"s_cbranch_scc1 {name}_done")
    load_args(k)
    e("v_and_b32 v1, 63, v0")
    e("v_lshrrev_b32 v5, 6, v0")
    e("s_waitcnt lgkmcnt(0)")
    if first:
        e(f"s_cmp_lt_u32 s2, {NK}")
        e(f"s_cbranch_scc1 {name}_main")
        e(f"s_cmp_ge_u32 s2, {NK+NX+NW13}")
        e("s_cbranch_scc1 prep_w2")
        e(f"s_cmp_ge_u32 s2, {NK+NX}")
        e("s_cbranch_scc1 prep_w13")
        role_xt(k)
        e("prep_w13:")
        role_w13(k)
        e("prep_w2:")
        role_w2(k)
        e(f"{name}_main:")
        stamp(0)
        kgen(k)
        stamp(1)
        e(f"""
        v_lshlrev_b32 v6, 4, v0
        ds_read_b128 v[8:11], v6 offset:{KPL}
        ds_read_b128 v[12:15], v6 offset:{KPL+16}
        ds_read_b128 v[16:19], v6 offset:{KPL+4096}
        ds_read_b128 v[20:23], v6 offset:{KPL+4112}
        """)
    else:
        stamp(0); stamp(1)
        k.srd(44, 30, OFF_K16, 512 * KROW * 2)
        e(f"""
        s_mul_i32 s40, s2, {KROW*2}
        v_lshlrev_b32 v6, 4, v0
        buffer_load_dwordx4 v[8:11], v6, s[44:47], s40 offen
        buffer_load_dwordx4 v[12:15], v6, s[44:47], s40 offen offset:16
        v_add_u32 v7, 16, v6
        buffer_load_dwordx4 v[16:19], v7, s[44:47], s40 offen offset:4080
        v_add_u32 v7, 32, v6
        buffer_load_dwordx4 v[20:23], v7, s[44:47], s40 offen offset:4080
        s_add_u32 s60, s30, {OFF_KSC}
        s_addc_u32 s61, s31, 0
        s_lshl_b32 s42, s2, 2
        s_load_dword s62, s[60:61], s42
        """)
    k.srd(48, 30, OFF_XT, MB2)
    k.srd(52, 30, off_st, 16384)
    k.srd(56, 30, OFF_YT + layer * 0x2000000, MB2)
    k.srd(64, 30, OFF_CNT, 65536)
    def xloads():
        e(f"""
        s_lshl_b32 s41, s2, 12
        buffer_load_dwordx4 v[24:27], v6, s[48:51], s41 offen{SC}
        v_lshlrev_b32 v7, 6, v0
        buffer_load_dwordx4 v[28:31], v7, s[52:55], 0 offen{SC}
        buffer_load_dwordx4 v[32:35], v7, s[52:55], 0 offen offset:16{SC}
        buffer_load_dwordx4 v[36:39], v7, s[52:55], 0 offen offset:32{SC}
        buffer_load_dwordx4 v[40:43], v7, s[52:55], 0 offen offset:48{SC}
        """)
    if not first: xloads()
    e(f"""
    v_mov_b32 v44, 0
    v_mov_b32 v45, 0
    v_mov_b32 v46, 0
    v_mov_b32 v47, 0
    ds_write_b128 v6, v[44:47] offset:{URB + 4608}
    v_cmp_gt_u32 vcc, 32, v0
    s_and_saveexec_b64 s[70:71], vcc
    ds_write_b128 v6, v[44:47] offset:{URB + 4608 + 4096}
    s_mov_b64 exec, s[70:71]
    """)
    def copies(b, extra):
        for j in range(7):
            e(f"v_alignbit_b32 v{48+j}, v{b+j+1}, v{b+j}, 16")
        for c in range(8):
            sh = c + 1
            if sh % 2 == 0:
                src = b + sh // 2; tmp = 56
            else:
                src = 48 + (sh - 1) // 2; tmp = 60
            if src % 2 == 0:
                e(f"ds_write_b128 v6, v[{src}:{src+3}] offset:{c*CS + extra}")
            else:
                for q in range(4): e(f"v_mov_b32 v{tmp+q}, v{src+q}")
                e(f"ds_write_b128 v6, v[{tmp}:{tmp+3}] offset:{c*CS + extra}")
    if first: e("s_waitcnt lgkmcnt(0)")
    else: e("s_waitcnt vmcnt(7)")
    copies(8, 0)
    if not first: e("s_waitcnt vmcnt(5)")
    e("v_cmp_gt_u32 vcc, 8, v0")
    e("s_and_saveexec_b64 s[70:71], vcc")
    e(f"s_cbranch_execz {name}_c2")
    copies(16, 4096)
    e(f"{name}_c2:")
    e("s_mov_b64 exec, s[70:71]")
    if first:
        k.srd(72, 28, 0, 256)
        e(f"""
        v_mov_b32 v7, 0
        s_mov_b32 s76, 0
{name}_p0:
        buffer_load_dword v9, v7, s[72:75], 0 offen sc0 sc1
        s_waitcnt vmcnt(0)
        v_readfirstlane_b32 s77, v9
        s_add_u32 s76, s76, 1
        s_cmp_ge_u32 s77, {NX}
        s_cbranch_scc1 {name}_p0d
        s_cmp_lt_u32 s76, 0x400000
        s_cbranch_scc0 {name}_p0d
        s_sleep 2
        s_branch {name}_p0
{name}_p0d:
        """)
        xloads()
    stamp(2)
    e("s_waitcnt vmcnt(0)")
    stamp(3)
    for ee in range(8):
        dw = ee >> 1
        if ee & 1: e(f"v_and_b32 v{64+ee}, 0xffff0000, v{24+dw}")
        else: e(f"v_lshlrev_b32 v{64+ee}, 16, v{24+dw}")
        ln_params(k, 28 + 2 * ee, 29 + 2 * ee, 72, 73, 74, 75)
        ln_apply(k, 64 + ee, 72, 73, 74, 75, 76)
        e(f"v_cvt_f16_f32 v{64+ee}, v{64+ee}")
    for p in range(4):
        e(f"v_pack_b32_f16 v{80+p}, v{64+7-2*p}, v{64+6-2*p}")
    e(f"""
    v_lshlrev_b32 v7, 3, v0
    v_sub_u32 v7, 2040, v7
    v_lshrrev_b32 v84, 6, v7
    v_mul_u32_u24 v84, 144, v84
    v_and_b32 v7, 63, v7
    v_lshl_add_u32 v7, v7, 1, v84
    ds_write_b128 v7, v[80:83] offset:{URB}
    v_and_b32 v2, 31, v1
    v_lshrrev_b32 v3, 5, v1
    v_and_b32 v7, 7, v2
    v_mul_u32_u24 v90, {CS}, v7
    v_lshrrev_b32 v7, 3, v2
    v_add_u32 v7, v7, v3
    v_lshl_add_u32 v90, v7, 4, v90
    v_lshl_add_u32 v90, v5, 10, v90
    v_sub_u32 v7, 31, v2
    v_lshl_add_u32 v7, v5, 3, v7
    v_mul_u32_u24 v91, 144, v7
    v_lshl_add_u32 v91, v3, 4, v91
    v_add_u32 v91, {URB}, v91
    """)
    for r in range(32):
        e(f"v_mov_b32 v{128+r}, 0")
    e("s_waitcnt lgkmcnt(0)")
    e("s_barrier")
    stamp(4)
    F = lambda q: 96 + 4 * (q % 4)
    B = lambda s: 112 + 4 * (s % 3)
    def rdF(q): e(f"ds_read_b128 v[{F(q)}:{F(q)+3}], v90 offset:{32*q}")
    def rdB(s): e(f"ds_read_b128 v[{B(s)}:{B(s)+3}], v91 offset:{144*(s>>2) + 32*(s&3)}")
    rdF(0); rdF(1); rdF(2); rdB(0)
    for s in range(32):
        if s < 31:
            rdF(s + 3); rdB(s + 1)
            e("s_waitcnt lgkmcnt(2)")
        else:
            e("s_waitcnt lgkmcnt(0)")
        e(f"v_mfma_f32_32x32x16_f16 v[128:143], v[{F(s)}:{F(s)+3}], v[{B(s)}:{B(s)+3}], v[128:143]")
        e(f"v_mfma_f32_32x32x16_f16 v[144:159], v[{F(s+2)}:{F(s+2)+3}], v[{B(s)}:{B(s)+3}], v[144:159]")
    stamp(5)
    if l0: k.srd(44, 4, 0, MB2)
    else: k.srd(44, 30, OFF_X2, MB2)
    k.srd(48, 16, 0, 1024)
    e(f"""
    s_and_b32 s85, s2, 7
    s_lshl_b32 s85, s85, 6
    s_lshr_b32 s86, s2, 3
    s_add_u32 s85, s85, s86
    s_lshl_b32 s40, s85, 12
    v_lshlrev_b32 v92, 10, v5
    v_lshl_add_u32 v92, v1, 4, v92
    buffer_load_dwordx4 v[96:99], v92, s[44:47], s40 offen
    v_lshlrev_b32 v93, 4, v1
    buffer_load_dwordx4 v[100:103], v93, s[48:51], 0 offen
    v_lshlrev_b32 v94, 3, v5
    s_lshl_b32 s41, s85, 5
    buffer_load_dwordx2 v[104:105], v94, s[52:55], s41 offen{SC}
    s_barrier
    v_lshlrev_b32 v7, 13, v5
    v_lshl_add_u32 v7, v1, 4, v7
    """)
    for ta in range(8):
        e(f"ds_write_b128 v7, v[{128+4*ta}:{131+4*ta}] offset:{1024*ta}")
    e("""
    s_waitcnt lgkmcnt(0)
    s_barrier
    v_lshlrev_b32 v7, 11, v5
    v_lshl_add_u32 v7, v1, 4, v7
    """)
    for it in range(2):
        for p in range(4):
            e(f"ds_read_b128 v[{8+16*it+4*p}:{11+16*it+4*p}], v7 offset:{8192*p + 1024*it}")
    e("s_waitcnt lgkmcnt(0)")
    for it in range(2):
        b = 8 + 16 * it
        for q in range(4):
            e(f"v_add_f32 v{b+q}, v{b+q}, v{b+4+q}")
            e(f"v_add_f32 v{b+8+q}, v{b+8+q}, v{b+12+q}")
            e(f"v_add_f32 v{b+q}, v{b+q}, v{b+8+q}")
            e(f"v_mul_f32 v{b+q}, s62, v{b+q}")
        e(f"v_cvt_pk_bf16_f32 v{44+2*it}, v{b}, v{b+1}")
        e(f"v_cvt_pk_bf16_f32 v{45+2*it}, v{b+2}, v{b+3}")
    e("""
    v_lshlrev_b32 v7, 7, v2
    v_lshl_add_u32 v7, v5, 5, v7
    v_lshl_add_u32 v7, v3, 3, v7
    ds_write_b64 v7, v[44:45] offset:32768
    ds_write_b64 v7, v[46:47] offset:32784
    s_waitcnt lgkmcnt(0)
    s_barrier
    v_lshlrev_b32 v7, 4, v0
    ds_read_b128 v[44:47], v7 offset:32768
    s_lshl_b32 s42, s2, 12
    s_waitcnt lgkmcnt(0)
    buffer_store_dwordx4 v[44:47], v7, s[56:59], s42 offen sc0 sc1
    s_waitcnt vmcnt(0)
    s_barrier
    v_readfirstlane_b32 s50, v5
    """)
    stamp(6)
    e(f"""
    s_and_b32 s51, s2, 15
    s_add_u32 s51, s51, {16*layer}
    s_lshl_b32 s51, s51, 8
    v_and_b32 v9, 15, v1
    v_add_u32 v9, {16*layer}, v9
    v_lshlrev_b32 v9, 8, v9
    s_cmp_lg_u32 s50, 0
    s_cbranch_scc1 {name}_polled
    v_mov_b32 v7, 0
    v_mov_b32 v8, 1
    v_cmp_eq_u32 vcc, 0, v1
    s_and_saveexec_b64 s[70:71], vcc
    buffer_atomic_add v8, v7, s[64:67], s51 offen
    s_mov_b64 exec, s[70:71]
    s_mov_b32 s76, 0
{name}_poll:
    buffer_load_dword v10, v9, s[64:67], 0 offen sc0 sc1
    s_waitcnt vmcnt(0)
    v_cmp_gt_u32 vcc, 32, v10
    s_add_u32 s76, s76, 1
    s_cmp_eq_u64 vcc, 0
    s_cbranch_scc1 {name}_polled
    s_cmp_lt_u32 s76, 0x400000
    s_cbranch_scc0 {name}_polled
    s_sleep 1
    s_branch {name}_poll
{name}_polled:
    s_barrier
    s_lshl_b32 s40, s85, 3
    v_lshlrev_b32 v7, 13, v0
    buffer_load_dwordx2 v[8:9], v7, s[56:59], s40 offen sc0 sc1
    v_add_u32 v7, 4096, v7
    buffer_load_dwordx2 v[10:11], v7, s[56:59], s40 offen sc0 sc1
    v_lshrrev_b32 v7, 2, v0
    v_lshlrev_b32 v7, 4, v7
    v_lshl_add_u32 v7, v0, 4, v7
    s_waitcnt vmcnt(0)
    ds_write_b128 v7, v[8:11]
    v_mul_u32_u24 v7, 80, v1
    s_waitcnt lgkmcnt(0)
    s_barrier
    ds_read_b128 v[8:11], v7
    ds_read_b128 v[12:15], v7 offset:16
    ds_read_b128 v[16:19], v7 offset:32
    ds_read_b128 v[20:23], v7 offset:48
    s_lshl_b32 s52, s50, 1
    s_lshl_b32 s53, s52, 16
    s_add_u32 s52, s52, 1
    s_lshl_b32 s52, s52, 24
    s_or_b32 s52, s52, s53
    s_or_b32 s52, s52, 0x0c0c
    """)
    stamp(7)
    k.srd(60, 30, off_xout, MB2)
    k.srd(68, 30, OFF_AP, MB2)
    ln_params(k, 104, 105, 40, 41, 42, 43)
    e("s_waitcnt vmcnt(0) lgkmcnt(0)")
    stamp(8)
    for ee in range(8):
        dw = ee >> 1
        X = 48 + ee; U = 56 + ee
        if ee & 1: e(f"v_and_b32 v{X}, 0xffff0000, v{96+dw}")
        else: e(f"v_lshlrev_b32 v{X}, 16, v{96+dw}")
        e(f"v_mov_b32 v{U}, v{X}")
        ln_apply(k, U, 40, 41, 42, 43, 44)
        if ee & 1: e(f"v_and_b32 v43, 0xffff0000, v{100+dw}")
        else: e(f"v_lshlrev_b32 v43, 16, v{100+dw}")
        e(f"v_mul_f32 v{U}, v{U}, v43")
        bf16r(k, U, U)
        e(f"v_perm_b32 v43, v{9+2*ee}, v{8+2*ee}, s52")
        e(f"v_add_f32 v{U}, v43, v{U}")
        bf16r(k, U, U)
        e(f"v_add_f32 v{X}, v{X}, v{U}")
        bf16r(k, X, X)
    e("v_add_f32 v44, v48, v49")
    for ee in range(2, 8): e(f"v_add_f32 v44, v44, v{48+ee}")
    wave_reduce(k, 44, "v_add_f32", 45, 76)
    e("v_mul_f32 v44, 0x3b000000, v44")
    for ee in range(8):
        e(f"v_sub_f32 v{56+ee}, v{48+ee}, v44")
    e("v_mul_f32 v45, v56, v56")
    for ee in range(1, 8): e(f"v_fmac_f32 v45, v{56+ee}, v{56+ee}")
    wave_reduce(k, 45, "v_add_f32", 46, 80)
    e("v_mul_f32 v45, 0x3b000000, v45")
    bf16r(k, 40, 44)
    bf16r(k, 45, 45)
    e("v_add_f32 v45, 0x3727c5ac, v45")
    bf16r(k, 45, 45)
    e("v_sqrt_f32 v45, v45")
    bf16r(k, 41, 45)
    e("v_rcp_f32 v42, v41")
    e("s_mov_b32 s43, 0x07060302")
    for p in range(4):
        e(f"v_perm_b32 v{64+p}, v{49+2*p}, v{48+2*p}, s43")
    for ee in range(8):
        ln_apply(k, 48 + ee, 40, 41, 42, 43, 44)
    for p in range(4):
        e(f"v_perm_b32 v{68+p}, v{49+2*p}, v{48+2*p}, s43")
    e(f"""
    s_lshl_b32 s40, s85, 12
    buffer_store_dwordx4 v[64:67], v92, s[60:63], s40 offen
    s_lshr_b32 s42, s85, 2
    s_lshl_b32 s42, s42, 14
    s_and_b32 s84, s85, 3
    s_lshl_b32 s84, s84, 6
    s_add_u32 s42, s42, s84
    v_lshrrev_b32 v72, 2, v1
    v_lshlrev_b32 v72, 10, v72
    v_and_b32 v73, 3, v1
    v_lshl_add_u32 v72, v73, 8, v72
    v_lshl_add_u32 v72, v5, 4, v72
    buffer_store_dwordx4 v[68:71], v72, s[68:71], s42 offen
    """)
    if STAMP:
        stamp(9)
        e("s_waitcnt vmcnt(0)")
        stamp(10)
        e("s_lshl_b32 s98, s2, 6")
        e(f"s_add_u32 s98, s98, {0x100000*(layer+1)}")
        e("v_mov_b32 v31, 0")
        e("s_cmp_lg_u32 s50, 0")
        e(f"s_cbranch_scc1 {name}_done")
        k.srd(64, 30, 0x3000000, 0x1000000)
        for i in range(11):
            e(f"buffer_store_dword v{124+i if i < 4 else (95 if i == 4 else 102+i)}, v31, s[64:67], s98 offen offset:{4*i}")
    e(f"{name}_done:")
    e("s_endpgm")
    return k.text(vgpr=160)
```

```python
from asmlib import Kern
from gen_common import *

OFF_CNT = 0x17C0000

def gen_ffn(name, layer):
    final = layer == 1
    off_xres = OFF_X3 if final else OFF_X1
    k = Kern(name)
    e = k.e
    e("s_cmp_ge_u32 s2, 256")
    e(f"s_cbranch_scc1 {name}_done")
    load_args(k)
    e("v_and_b32 v1, 63, v0")
    e("v_lshrrev_b32 v5, 6, v0")
    e("v_lshlrev_b32 v2, 4, v1")
    e("v_readfirstlane_b32 s50, v5")
    e("s_waitcnt lgkmcnt(0)")
    k.srd(44, 30, OFF_AP, MB2)
    k.srd(52, 30, OFF_W13P, 43 * 65536)
    k.srd(56, 30, OFF_HP + layer * 0x1000000, 128 * 43 * 1024)
    k.srd(84, 30, OFF_W2P, 8 * 43 * 4096)
    k.srd(88, 30, OFF_CNT, 65536)
    e("""
    s_and_b32 s40, s2, 15
    s_lshr_b32 s41, s2, 4
    s_mul_i32 s42, s41, 3
    s_lshl_b32 s43, s41, 1
    s_add_u32 s43, s43, 11
    s_cmp_lt_u32 s41, 11
    s_cselect_b32 s42, s42, s43
    s_lshl_b32 s80, s42, 16
    s_lshl_b32 s81, s50, 13
    s_add_u32 s80, s80, s81
    s_lshl_b32 s48, s40, 3
    s_lshl_b32 s49, s50, 1
    s_add_u32 s48, s48, s49
    s_lshl_b32 s49, s48, 14
    """)
    e("""
    s_and_b32 s92, s41, 1
    s_lshl_b32 s93, s40, 1
    s_add_u32 s92, s92, s93
    s_lshr_b32 s93, s41, 1
    s_mul_i32 s94, s92, 172
    s_add_u32 s94, s94, s50
    s_lshl_b32 s94, s94, 10
    s_mul_i32 s95, s93, 43
    s_add_u32 s95, s95, s50
    s_lshl_b32 s95, s95, 12
    """)
    for sl in range(4):
        e(f"v_add_u32 v{8+sl}, {32768*sl}, v2")
    def dma(g):
        slot = g % 4
        for hh in range(2):
            e(f"s_add_u32 s51, s81, {slot*32768 + hh*4096}")
            e(f"s_mov_b32 m0, s51")
            e(f"s_add_u32 s51, s80, {g*32768 + hh*4096}")
            for i in range(4):
                e(f"buffer_load_dwordx4 v2, s[52:55], s51 offen offset:{1024*i} lds")
    STAMP = False
    stamp_n = [0]
    SREG = list(range(52, 64)) + list(range(10, 16))
    def stamp(i=None):
        if not STAMP: return
        if i is None:
            i = stamp_n[0]; stamp_n[0] += 1
        e("s_memrealtime s[96:97]")
        e("s_waitcnt lgkmcnt(0)")
        e(f"v_accvgpr_write_b32 a{176+i}, s96")
    NST = 11
    def w2loads():
        for i in range(NST):
            e(f"s_add_u32 s51, s95, {i*16384}")
            if i == NST - 1:
                e("s_cmp_eq_u32 s50, 3")
                e("s_cselect_b32 s51, 0x7f000000, s51")
            for c in range(4):
                a = (i * 4 + c) * 4
                e(f"buffer_load_dwordx4 a[{a}:{a+3}], v2, s[84:87], s51 offen offset:{1024*c}")
    ACT = lambda tt, s: 128 + (tt * 16 + s) * 4
    ACC = lambda st, q, tt: (64 if st == 0 else 32) + (q * 2 + tt) * 4
    WF = lambda buf, q: 96 + buf * 16 + q * 4
    def dma_list(g):
        slot = g % 4
        out = []
        for hh in range(2):
            for i in range(4):
                pre = ""
                if i == 0:
                    pre = (f"s_add_u32 s51, s81, {slot*32768 + hh*4096}\ns_mov_b32 m0, s51\n"
                           f"s_add_u32 s61, s80, {g*32768 + hh*4096}\n")
                out.append(pre + f"buffer_load_dwordx4 v2, s[52:55], s61 offen offset:{1024*i} lds")
        return out
    def w2_list():
        out = []
        for i in range(NST):
            for c in range(4):
                a = (i * 4 + c) * 4
                pre = ""
                if c == 0:
                    pre = f"s_add_u32 s63, s95, {i*16384}\n"
                    if i == NST - 1:
                        pre += "s_cmp_eq_u32 s50, 3\ns_cselect_b32 s63, 0x7f000000, s63\n"
                out.append(pre + f"buffer_load_dwordx4 a[{a}:{a+3}], v2, s[84:87], s63 offen offset:{1024*c}")
        return out
    def epi_list(u):
        sub = Kern("x"); ee_ = sub.e
        st = u % 2
        for tt in range(2):
            for hh in range(2):
                ga = ACC(st, hh, tt); ua = ACC(st, 2 + hh, tt)
                for r in range(4):
                    G = ga + r; U = ua + r
                    bf16r(sub, G, G)
                    bf16r(sub, U, U)
                    ee_(f"v_mul_f32 v{20+r}, 0xbfb8aa3b, v{G}")
                    ee_(f"v_exp_f32 v{20+r}, v{20+r}")
                    ee_(f"v_add_f32 v{20+r}, 1.0, v{20+r}")
                    ee_(f"v_rcp_f32 v{20+r}, v{20+r}")
                    ee_(f"v_mul_f32 v{G}, v{G}, v{20+r}")
                    bf16r(sub, G, G)
                    ee_(f"v_mul_f32 v{G}, v{G}, v{U}")
                ee_(f"v_cvt_pk_bf16_f32 v{24+4*tt+2*hh}, v{ga}, v{ga+1}")
                ee_(f"v_cvt_pk_bf16_f32 v{25+4*tt+2*hh}, v{ga+2}, v{ga+3}")
        st_ = []
        for tt in range(2):
            st_.append(f"s_add_u32 s60, s48, {tt}\ns_mul_i32 s60, s60, 43\ns_add_u32 s60, s60, s42\ns_add_u32 s60, s60, {u}\n"
                       f"s_lshl_b32 s60, s60, 10\nbuffer_store_dwordx4 v[{24+4*tt}:{27+4*tt}], v2, s[56:59], s60 offen sc0 sc1")
        return [x.strip() for x in sub.L], st_
    def compute(g, vm, valu, tail):
        slot = g % 4; half = g % 2; st = (g >> 1) % 2
        vb = 8 + slot
        def rd(sl, buf):
            for q in range(4):
                e(f"ds_read_b128 v[{WF(buf,q)}:{WF(buf,q)+3}], v{vb} offset:{sl*4096 + q*1024}")
        rd(0, 0)
        nv = len(valu); nm = len(vm)
        vi = 0; mi = 0
        for sl in range(8):
            buf = sl & 1
            if sl < 7:
                rd(sl + 1, buf ^ 1)
                e("s_waitcnt lgkmcnt(4)")
            else:
                e("s_waitcnt lgkmcnt(0)")
            s = half * 8 + sl
            n = 0
            for q in range(4):
                for tt in range(2):
                    a = ACC(st, q, tt)
                    e(f"v_mfma_f32_16x16x32_bf16 v[{a}:{a+3}], v[{WF(buf,q)}:{WF(buf,q)+3}], v[{ACT(tt,s)}:{ACT(tt,s)+3}], v[{a}:{a+3}]")
                    n += 1
                    tgt = (nv * (sl * 8 + n)) // 64
                    while vi < tgt:
                        e(valu[vi]); vi += 1
                    if n in (2, 6):
                        tgm = (nm * (sl * 2 + (1 if n == 2 else 2)) + 15) // 16
                        while mi < tgm:
                            e(vm[mi]); mi += 1
        assert vi == nv and mi == nm
        for t in tail: e(t)
    def zero_acc(st):
        b = 64 if st == 0 else 32
        for r in range(32): e(f"v_mov_b32 v{b+r}, 0")
    def path(nun):
        stamp(0)
        for x in dma_list(0): e(x)
        for tt in range(2):
            for s in range(16):
                e(f"s_add_u32 s51, s49, {tt*16384 + s*1024}")
                e(f"buffer_load_dwordx4 v[{ACT(tt,s)}:{ACT(tt,s)+3}], v2, s[44:47], s51 offen")
        for g in (1, 2, 3):
            for x in dma_list(g): e(x)
        zero_acc(0); zero_acc(1)
        W = w2_list()
        if nun == 3:
            waits = [24, 24, 24, 26, 22, 28]
            vms = [W[0:8], dma_list(4), dma_list(5), W[8:20], W[20:32], W[32:44]]
        else:
            waits = [24, 27, 30, 35]
            vms = [W[0:11], W[11:22], W[22:33], W[33:44]]
        for g in range(2 * nun):
            e(f"s_waitcnt vmcnt({waits[g]})")
            e("s_barrier")
            stamp(1 + g)
            valu = []; tail = []
            if g >= 2 and g % 2 == 0:
                valu, tail = epi_list((g >> 1) - 1)
                st = ((g >> 1) - 1) % 2
                b = 64 if st == 0 else 32
                tail = tail + [f"v_mov_b32 v{b+r}, 0" for r in range(32)]
            compute(g, vms[g], valu, tail)
        valu, tail = epi_list(nun - 1)
        for x in valu: e(x)
        for x in tail: e(x)
        stamp(7)
        e(f"s_branch {name}_g2")
    e("s_cmp_lt_u32 s41, 11")
    e(f"s_cbranch_scc0 {name}_two")
    path(3)
    e(f"{name}_two:")
    path(2)
    e(f"{name}_g2:")
    k.srd(44, 30, OFF_HP + layer * 0x1000000, 128 * 43 * 1024)
    k.srd(56, 30, off_xres, MB2)
    if final: k.srd(60, 26, 0, MB2)
    else:
        k.srd(60, 30, OFF_X2, MB2)
        k.srd(64, 30, OFF_XT, MB2)
        k.srd(68, 30, OFF_ST2, 16384)
    e("""
    v_and_b32 v3, 15, v1
    v_lshrrev_b32 v4, 4, v1
    v_lshl_add_u32 v6, v5, 4, v3
    v_lshlrev_b32 v6, 10, v6
    v_lshl_add_u32 v6, v4, 5, v6
    s_lshl_b32 s48, s92, 16
    s_lshl_b32 s49, s93, 7
    s_add_u32 s48, s48, s49
    s_waitcnt vmcnt(0)
    s_barrier
    """)
    stamp(8)
    e(f"""
    s_add_u32 s51, s40, {64 + 16*layer}
    s_lshl_b32 s51, s51, 8
    v_mov_b32 v7, 0
    v_mov_b32 v8, 1
    s_cmp_lg_u32 s50, 0
    s_cbranch_scc1 {name}_polled
    v_cmp_eq_u32 vcc, 0, v1
    s_and_saveexec_b64 s[72:73], vcc
    buffer_atomic_add v8, v7, s[88:91], s51 offen
    s_mov_b64 exec, s[72:73]
    s_mov_b32 s74, 0
{name}_poll:
    buffer_load_dword v9, v7, s[88:91], s51 offen sc0 sc1
    s_waitcnt vmcnt(0)
    v_readfirstlane_b32 s75, v9
    s_add_u32 s74, s74, 1
    s_cmp_ge_u32 s75, 16
    s_cbranch_scc1 {name}_polled
    s_cmp_lt_u32 s74, 0x400000
    s_cbranch_scc0 {name}_polled
    s_sleep 1
    s_branch {name}_poll
{name}_polled:
    s_barrier
    """)
    stamp(9)
    e("""
    buffer_load_dwordx4 v[16:19], v6, s[56:59], s48 offen
    buffer_load_dwordx4 v[20:23], v6, s[56:59], s48 offen offset:16
    """)
    ACC2 = lambda c, tt: 64 + (tt * 4 + c) * 4
    HF = lambda i, tt: 128 + (i % 8) * 16 + tt * 4
    def hloads(i):
        for tt in range(4):
            e(f"s_add_u32 s51, s94, {tt*43*1024 + i*4096}")
            e(f"buffer_load_dwordx4 v[{HF(i,tt)}:{HF(i,tt)+3}], v2, s[44:47], s51 offen sc0 sc1")
    for r in range(64): e(f"v_mov_b32 v{64+r}, 0")
    for i in range(8): hloads(i)
    for i in range(NST):
        issued = min(NST, 8 + i)
        e(f"s_waitcnt vmcnt({4*(issued-1-i)})")
        if i == 0: stamp(10)
        for tt in range(4):
            for c in range(4):
                a = ACC2(c, tt); w = (i * 4 + c) * 4
                e(f"v_mfma_f32_16x16x32_bf16 v[{a}:{a+3}], a[{w}:{w+3}], v[{HF(i,tt)}:{HF(i,tt)+3}], v[{a}:{a+3}]")
        if i + 8 < NST: hloads(i + 8)
    stamp(11)
    e("v_lshl_add_u32 v7, v5, 14, v2")
    for tc in range(16):
        e(f"ds_write_b128 v7, v[{64+4*tc}:{67+4*tc}] offset:{1024*tc}")
    e("s_waitcnt lgkmcnt(0)")
    e("s_barrier")
    e("v_lshl_add_u32 v7, v5, 12, v2")
    for c in range(4):
        for p in range(4):
            e(f"ds_read_b128 v[{64+16*c+4*p}:{67+16*c+4*p}], v7 offset:{16384*p + 1024*c}")
    e("s_waitcnt lgkmcnt(0)")
    for c in range(4):
        b = 64 + 16 * c
        for r in range(4):
            e(f"v_add_f32 v{b+r}, v{b+r}, v{b+4+r}")
            e(f"v_add_f32 v{b+8+r}, v{b+8+r}, v{b+12+r}")
            e(f"v_add_f32 v{b+r}, v{b+r}, v{b+8+r}")
            bf16r(k, b + r, b + r)
            idx = 4 * c + r
            dw = idx >> 1
            if idx & 1: e(f"v_and_b32 v24, 0xffff0000, v{16+dw}")
            else: e(f"v_lshlrev_b32 v24, 16, v{16+dw}")
            e(f"v_add_f32 v{b+r}, v{b+r}, v24")
            bf16r(k, b + r, b + r)
    e("s_mov_b32 s43, 0x07060302")
    for c in range(4):
        b = 64 + 16 * c
        e(f"v_perm_b32 v{32+2*c}, v{b+1}, v{b}, s43")
        e(f"v_perm_b32 v{33+2*c}, v{b+3}, v{b+2}, s43")
    e("buffer_store_dwordx4 v[32:35], v6, s[60:63], s48 offen")
    e("buffer_store_dwordx4 v[36:39], v6, s[60:63], s48 offen offset:16")
    if not final:
        e("v_mov_b32 v24, 0")
        e("v_mov_b32 v25, 0")
        for c in range(4):
            b = 64 + 16 * c
            for r in range(4):
                e(f"v_add_f32 v24, v24, v{b+r}")
                e(f"v_fmac_f32 v25, v{b+r}, v{b+r}")
        e(f"""
        v_xor_b32 v26, 16, v1
        v_lshlrev_b32 v26, 2, v26
        v_xor_b32 v27, 32, v1
        v_lshlrev_b32 v27, 2, v27
        ds_bpermute_b32 v28, v26, v24
        ds_bpermute_b32 v29, v26, v25
        s_waitcnt lgkmcnt(0)
        v_add_f32 v24, v24, v28
        v_add_f32 v25, v25, v29
        ds_bpermute_b32 v28, v27, v24
        ds_bpermute_b32 v29, v27, v25
        s_waitcnt lgkmcnt(0)
        v_add_f32 v24, v24, v28
        v_add_f32 v25, v25, v29
        v_lshl_add_u32 v26, v5, 4, v3
        v_lshlrev_b32 v26, 3, v26
        s_lshl_b32 s51, s92, 9
        v_cmp_gt_u32 vcc, 16, v1
        s_and_saveexec_b64 s[72:73], vcc
        buffer_atomic_add_f32 v24, v26, s[68:71], s51 offen
        buffer_atomic_add_f32 v25, v26, s[68:71], s51 offen offset:4
        s_mov_b64 exec, s[72:73]
        s_barrier
        v_lshl_add_u32 v26, v5, 4, v3
        v_mul_u32_u24 v26, 144, v26
        v_lshl_add_u32 v26, v4, 5, v26
        ds_write_b128 v26, v[32:35]
        ds_write_b128 v26, v[36:39] offset:16
        s_waitcnt lgkmcnt(0)
        s_barrier
        """)
        for it in range(2):
            e(f"v_add_u32 v26, {4*it}, v5")
            e(f"v_mul_u32_u24 v26, {8*144}, v26")
            e(f"v_lshl_add_u32 v26, v1, 1, v26")
            for ee in range(8):
                e(f"ds_read_u16 v{40+ee}, v26 offset:{144*ee}")
            e("s_waitcnt lgkmcnt(0)")
            for p in range(4):
                e(f"v_lshl_or_b32 v{48+p}, v{41+2*p}, 16, v{40+2*p}")
            e(f"""
            v_lshlrev_b32 v27, 12, v1
            v_lshl_add_u32 v27, v5, 4, v27
            s_lshl_b32 s51, s93, 18
            s_lshl_b32 s49, s92, 7
            s_add_u32 s51, s51, s49
            s_add_u32 s51, s51, {64*it}
            buffer_store_dwordx4 v[48:51], v27, s[64:67], s51 offen
            """)
    if STAMP:
        stamp(12)
        e("s_waitcnt vmcnt(0)")
        stamp(13)
        e("s_lshl_b32 s98, s2, 7")
        e(f"s_add_u32 s98, s98, {0x8000}")
        e("v_mov_b32 v31, 0")
        e("s_cmp_lg_u32 s50, 0")
        e(f"s_cbranch_scc1 {name}_done")
        for i in range(14):
            e(f"buffer_store_dword a{176+i}, v31, s[88:91], s98 offen offset:{4*i}")
    e(f"{name}_done:")
    e("s_endpgm")
    return k.text(vgpr=256, agpr=192)
```

```python
from asmlib import Kern
from gen_common import *

def gen_g1(name):
    k = Kern(name)
    e = k.e
    e("s_cmp_ge_u32 s2, 256")
    e(f"s_cbranch_scc1 {name}_done")
    load_args(k)
    e("v_and_b32 v1, 63, v0")
    e("v_lshrrev_b32 v5, 6, v0")
    e("v_lshlrev_b32 v2, 4, v1")
    e("v_readfirstlane_b32 s50, v5")
    e("s_waitcnt lgkmcnt(0)")
    k.srd(44, 30, OFF_AP, MB2)
    k.srd(52, 30, OFF_W13P, 43 * 65536)
    k.srd(56, 30, OFF_HP, 128 * 43 * 1024)
    e("""
    s_and_b32 s40, s2, 15
    s_lshr_b32 s41, s2, 4
    s_mul_i32 s42, s41, 3
    s_lshl_b32 s43, s41, 1
    s_add_u32 s43, s43, 11
    s_cmp_lt_u32 s41, 11
    s_cselect_b32 s42, s42, s43
    """)
    e("""
    s_lshl_b32 s80, s42, 16
    s_lshl_b32 s81, s50, 13
    s_add_u32 s80, s80, s81
    """)
    e("""
    s_lshl_b32 s48, s40, 3
    s_lshl_b32 s49, s50, 1
    s_add_u32 s48, s48, s49
    s_lshl_b32 s49, s48, 14
    """)
    for sl in range(4):
        e(f"v_add_u32 v{8+sl}, {32768*sl}, v2")
    def dma(g):
        slot = g % 4
        for hh in range(2):
            e(f"s_add_u32 s51, s81, {slot*32768 + hh*4096}")
            e(f"s_mov_b32 m0, s51")
            e(f"s_add_u32 s51, s80, {g*32768 + hh*4096}")
            for i in range(4):
                e(f"buffer_load_dwordx4 v2, s[52:55], s51 offen offset:{1024*i} lds")
    ACT = lambda tt, s: 128 + (tt * 16 + s) * 4
    ACC = lambda q, tt: 64 + (q * 2 + tt) * 4
    WF = lambda buf, q: 96 + buf * 16 + q * 4
    def compute(g):
        slot = g % 4; half = g % 2
        vb = 8 + slot
        def rd(sl, buf):
            for q in range(4):
                e(f"ds_read_b128 v[{WF(buf,q)}:{WF(buf,q)+3}], v{vb} offset:{sl*4096 + q*1024}")
        rd(0, 0)
        for sl in range(8):
            buf = sl & 1
            if sl < 7:
                rd(sl + 1, buf ^ 1)
                e("s_waitcnt lgkmcnt(4)")
            else:
                e("s_waitcnt lgkmcnt(0)")
            s = half * 8 + sl
            for q in range(4):
                for tt in range(2):
                    a = ACC(q, tt)
                    e(f"v_mfma_f32_16x16x32_bf16 v[{a}:{a+3}], v[{WF(buf,q)}:{WF(buf,q)+3}], v[{ACT(tt,s)}:{ACT(tt,s)+3}], v[{a}:{a+3}]")
    def zero_acc():
        for r in range(32): e(f"v_mov_b32 v{64+r}, 0")
    def epilogue(u):
        for tt in range(2):
            for hh in range(2):
                ga = ACC(hh, tt); ua = ACC(2 + hh, tt)
                for r in range(4):
                    G = ga + r; U = ua + r
                    bf16r(k, G, G)
                    bf16r(k, U, U)
                    e(f"v_mul_f32 v20, 0xbfb8aa3b, v{G}")
                    e("v_exp_f32 v20, v20")
                    e("v_add_f32 v20, 1.0, v20")
                    e("v_rcp_f32 v20, v20")
                    e(f"v_mul_f32 v{G}, v{G}, v20")
                    bf16r(k, G, G)
                    e(f"v_mul_f32 v{G}, v{G}, v{U}")
                e(f"v_cvt_pk_bf16_f32 v{24+4*tt+2*hh}, v{ga}, v{ga+1}")
                e(f"v_cvt_pk_bf16_f32 v{25+4*tt+2*hh}, v{ga+2}, v{ga+3}")
            e(f"s_add_u32 s60, s48, {tt}")
            e(f"s_mul_i32 s60, s60, 43")
            e(f"s_add_u32 s60, s60, s42")
            e(f"s_add_u32 s60, s60, {u}")
            e(f"s_lshl_b32 s60, s60, 10")
            e(f"buffer_store_dwordx4 v[{24+4*tt}:{27+4*tt}], v2, s[56:59], s60 offen")
    def path(nun):
        dma(0)
        for tt in range(2):
            for s in range(16):
                e(f"s_add_u32 s51, s49, {tt*16384 + s*1024}")
                e(f"buffer_load_dwordx4 v[{ACT(tt,s)}:{ACT(tt,s)+3}], v2, s[44:47], s51 offen")
        dma(1); dma(2); dma(3)
        zero_acc()
        if nun == 3: waits = [24, 16, 18, 18, 12, 2]
        else: waits = [24, 16, 10, 2]
        for g in range(2 * nun):
            e(f"s_waitcnt vmcnt({waits[g]})")
            e("s_barrier")
            if g >= 1 and g + 3 < 2 * nun: dma(g + 3)
            compute(g)
            if g & 1:
                epilogue(g >> 1)
                if g + 1 < 2 * nun: zero_acc()
        e("s_endpgm")
    e("s_cmp_lt_u32 s41, 11")
    e(f"s_cbranch_scc0 {name}_two")
    path(3)
    e(f"{name}_two:")
    path(2)
    e(f"{name}_done:")
    e("s_endpgm")
    return k.text(vgpr=256)

def gen_g2(name, off_xres, final):
    k = Kern(name)
    e = k.e
    e("s_cmp_ge_u32 s2, 256")
    e(f"s_cbranch_scc1 {name}_done")
    load_args(k)
    e("v_and_b32 v1, 63, v0")
    e("v_lshrrev_b32 v5, 6, v0")
    e("v_lshlrev_b32 v2, 4, v1")
    e("v_readfirstlane_b32 s50, v5")
    e("s_waitcnt lgkmcnt(0)")
    k.srd(44, 30, OFF_HP, 128 * 43 * 1024)
    k.srd(52, 30, OFF_W2P, 8 * 43 * 4096)
    k.srd(56, 30, off_xres, MB2)
    if final: k.srd(60, 26, 0, MB2)
    else:
        k.srd(60, 30, OFF_X2, MB2)
        k.srd(64, 30, OFF_XT, MB2)
        k.srd(68, 30, OFF_ST2, 16384)
    e("""
    s_and_b32 s40, s2, 31
    s_lshr_b32 s41, s2, 5
    s_mul_i32 s80, s40, 172
    s_add_u32 s80, s80, s50
    s_lshl_b32 s80, s80, 10
    s_mul_i32 s81, s41, 43
    s_add_u32 s81, s81, s50
    s_lshl_b32 s81, s81, 12
    """)
    e("""
    v_and_b32 v3, 15, v1
    v_lshrrev_b32 v4, 4, v1
    v_lshl_add_u32 v6, v5, 4, v3
    v_lshlrev_b32 v6, 10, v6
    v_lshl_add_u32 v6, v4, 5, v6
    s_lshl_b32 s48, s40, 16
    s_lshl_b32 s49, s41, 7
    s_add_u32 s48, s48, s49
    buffer_load_dwordx4 v[16:19], v6, s[56:59], s48 offen
    buffer_load_dwordx4 v[20:23], v6, s[56:59], s48 offen offset:16
    """)
    ACC = lambda c, tt: 64 + (tt * 4 + c) * 4
    HF = lambda b, tt: 128 + b * 32 + tt * 4
    WF = lambda b, c: 128 + b * 32 + 16 + c * 4
    NST = 11
    def loads(i):
        b = i % 3
        for tt in range(4):
            e(f"s_add_u32 s51, s80, {tt*43*1024 + i*4096}")
            e(f"buffer_load_dwordx4 v[{HF(b,tt)}:{HF(b,tt)+3}], v2, s[44:47], s51 offen")
        e(f"s_add_u32 s51, s81, {i*16384}")
        if i == NST - 1:
            e("s_cmp_eq_u32 s50, 3")
            e("s_cselect_b32 s51, 0x7f000000, s51")
        for c in range(4):
            e(f"buffer_load_dwordx4 v[{WF(b,c)}:{WF(b,c)+3}], v2, s[52:55], s51 offen offset:{1024*c}")
    for r in range(64): e(f"v_mov_b32 v{64+r}, 0")
    loads(0); loads(1)
    for i in range(NST):
        b = i % 3
        if i + 2 < NST:
            loads(i + 2); e("s_waitcnt vmcnt(16)")
        elif i + 1 < NST: e("s_waitcnt vmcnt(8)")
        else: e("s_waitcnt vmcnt(0)")
        for tt in range(4):
            for c in range(4):
                a = ACC(c, tt)
                e(f"v_mfma_f32_16x16x32_bf16 v[{a}:{a+3}], v[{WF(b,c)}:{WF(b,c)+3}], v[{HF(b,tt)}:{HF(b,tt)+3}], v[{a}:{a+3}]")
    e("v_lshl_add_u32 v7, v5, 14, v2")
    for tc in range(16):
        e(f"ds_write_b128 v7, v[{64+4*tc}:{67+4*tc}] offset:{1024*tc}")
    e("s_waitcnt lgkmcnt(0)")
    e("s_barrier")
    e("v_lshl_add_u32 v7, v5, 12, v2")
    for c in range(4):
        for p in range(4):
            e(f"ds_read_b128 v[{64+16*c+4*p}:{67+16*c+4*p}], v7 offset:{16384*p + 1024*c}")
    e("s_waitcnt lgkmcnt(0)")
    for c in range(4):
        b = 64 + 16 * c
        for r in range(4):
            e(f"v_add_f32 v{b+r}, v{b+r}, v{b+4+r}")
            e(f"v_add_f32 v{b+8+r}, v{b+8+r}, v{b+12+r}")
            e(f"v_add_f32 v{b+r}, v{b+r}, v{b+8+r}")
            bf16r(k, b + r, b + r)
            idx = 4 * c + r
            dw = idx >> 1
            if idx & 1: e(f"v_and_b32 v24, 0xffff0000, v{16+dw}")
            else: e(f"v_lshlrev_b32 v24, 16, v{16+dw}")
            e(f"v_add_f32 v{b+r}, v{b+r}, v24")
            bf16r(k, b + r, b + r)
    e("s_mov_b32 s43, 0x07060302")
    for c in range(4):
        b = 64 + 16 * c
        e(f"v_perm_b32 v{32+2*c}, v{b+1}, v{b}, s43")
        e(f"v_perm_b32 v{33+2*c}, v{b+3}, v{b+2}, s43")
    e("buffer_store_dwordx4 v[32:35], v6, s[60:63], s48 offen")
    e("buffer_store_dwordx4 v[36:39], v6, s[60:63], s48 offen offset:16")
    if not final:
        e("v_mov_b32 v24, 0")
        e("v_mov_b32 v25, 0")
        for c in range(4):
            b = 64 + 16 * c
            for r in range(4):
                e(f"v_add_f32 v24, v24, v{b+r}")
                e(f"v_fmac_f32 v25, v{b+r}, v{b+r}")
        e("""
        v_xor_b32 v26, 16, v1
        v_lshlrev_b32 v26, 2, v26
        v_xor_b32 v27, 32, v1
        v_lshlrev_b32 v27, 2, v27
        ds_bpermute_b32 v28, v26, v24
        ds_bpermute_b32 v29, v26, v25
        s_waitcnt lgkmcnt(0)
        v_add_f32 v24, v24, v28
        v_add_f32 v25, v25, v29
        ds_bpermute_b32 v28, v27, v24
        ds_bpermute_b32 v29, v27, v25
        s_waitcnt lgkmcnt(0)
        v_add_f32 v24, v24, v28
        v_add_f32 v25, v25, v29
        v_lshl_add_u32 v26, v5, 4, v3
        v_lshlrev_b32 v26, 3, v26
        s_lshl_b32 s51, s40, 9
        v_cmp_gt_u32 vcc, 16, v1
        s_and_saveexec_b64 s[72:73], vcc
        s_cbranch_execz g2_nostat
        buffer_atomic_add_f32 v24, v26, s[68:71], s51 offen
        buffer_atomic_add_f32 v25, v26, s[68:71], s51 offen offset:4
g2_nostat:
        s_mov_b64 exec, s[72:73]
        s_barrier
        """)
        e("""
        v_lshl_add_u32 v26, v5, 4, v3
        v_mul_u32_u24 v26, 144, v26
        v_lshl_add_u32 v26, v4, 5, v26
        ds_write_b128 v26, v[32:35]
        ds_write_b128 v26, v[36:39] offset:16
        s_waitcnt lgkmcnt(0)
        s_barrier
        """)
        for it in range(2):
            e(f"v_add_u32 v26, {4*it}, v5")
            e(f"v_mul_u32_u24 v26, {8*144}, v26")
            e(f"v_lshl_add_u32 v26, v1, 1, v26")
            for ee in range(8):
                e(f"ds_read_u16 v{40+ee}, v26 offset:{144*ee}")
            e("s_waitcnt lgkmcnt(0)")
            for p in range(4):
                e(f"v_lshl_or_b32 v{48+p}, v{41+2*p}, 16, v{40+2*p}")
            e(f"""
            v_lshlrev_b32 v27, 12, v1
            v_lshl_add_u32 v27, v5, 4, v27
            s_lshl_b32 s51, s41, 18
            s_lshl_b32 s49, s40, 7
            s_add_u32 s51, s51, s49
            s_add_u32 s51, s51, {64*it}
            buffer_store_dwordx4 v[48:51], v27, s[64:67], s51 offen
            """)
    e(f"{name}_done:")
    e("s_endpgm")
    return k.text(vgpr=224)
```

```python
from asmlib import Kern
from gen_common import *
from gen_conv import ln_params, ln_apply

def gen_t(name, x_from_ws, off_st, off_xout):
    k = Kern(name)
    e = k.e
    e("s_cmp_ge_u32 s2, 256")
    e(f"s_cbranch_scc1 {name}_done")
    load_args(k)
    e("v_and_b32 v1, 63, v0")
    e("v_lshrrev_b32 v5, 6, v0")
    e("s_waitcnt lgkmcnt(0)")
    if x_from_ws is None: k.srd(44, 4, 0, MB2)
    else: k.srd(44, 30, x_from_ws, MB2)
    k.srd(48, 30, OFF_YT, MB2)
    k.srd(52, 30, off_st, 16384)
    k.srd(56, 16, 0, 1024)
    k.srd(60, 30, off_xout, MB2)
    k.srd(64, 30, OFF_AP, MB2)
    e("""
    s_lshl_b32 s40, s2, 13
    v_lshlrev_b32 v6, 5, v0
    buffer_load_dwordx4 v[8:11], v6, s[48:51], s40 offen
    buffer_load_dwordx4 v[12:15], v6, s[48:51], s40 offen offset:16
    v_lshlrev_b32 v7, 11, v5
    v_lshl_add_u32 v7, v1, 4, v7
    buffer_load_dwordx4 v[16:19], v7, s[44:47], s40 offen
    buffer_load_dwordx4 v[20:23], v7, s[44:47], s40 offen offset:1024
    v_lshlrev_b32 v2, 4, v5
    s_lshl_b32 s41, s2, 6
    buffer_load_dwordx4 v[24:27], v2, s[52:55], s41 offen
    v_lshlrev_b32 v3, 4, v1
    buffer_load_dwordx4 v[28:31], v3, s[56:59], 0 offen
    v_lshrrev_b32 v2, 2, v0
    v_lshl_add_u32 v2, v2, 4, v6
    s_waitcnt vmcnt(4)
    ds_write_b128 v2, v[8:11]
    ds_write_b128 v2, v[12:15] offset:16
    v_mul_u32_u24 v2, 144, v1
    v_lshl_add_u32 v2, v5, 2, v2
    s_waitcnt lgkmcnt(0)
    s_barrier
    """)
    for ee in range(8):
        e(f"ds_read_b32 v{32+ee}, v2 offset:{16*ee}")
    e("s_waitcnt vmcnt(0) lgkmcnt(0)")
    for rr in range(2):
        xb = 16 + 4 * rr
        ln_params(k, 24 + 2 * rr, 25 + 2 * rr, 40, 41, 42, 43)
        for ee in range(8):
            dw = ee >> 1
            X = 48 + ee; U = 56 + ee
            if ee & 1: e(f"v_and_b32 v{X}, 0xffff0000, v{xb+dw}")
            else: e(f"v_lshlrev_b32 v{X}, 16, v{xb+dw}")
            e(f"v_mov_b32 v{U}, v{X}")
            ln_apply(k, U, 40, 41, 42, 43, 44)
            if ee & 1: e(f"v_and_b32 v43, 0xffff0000, v{28+dw}")
            else: e(f"v_lshlrev_b32 v43, 16, v{28+dw}")
            e(f"v_mul_f32 v{U}, v{U}, v43")
            bf16r(k, U, U)
            if rr: e(f"v_and_b32 v43, 0xffff0000, v{32+ee}")
            else: e(f"v_lshlrev_b32 v43, 16, v{32+ee}")
            e(f"v_add_f32 v{U}, v43, v{U}")
            bf16r(k, U, U)
            e(f"v_add_f32 v{X}, v{X}, v{U}")
            bf16r(k, X, X)
        e("v_add_f32 v44, v48, v49")
        for ee in range(2, 8): e(f"v_add_f32 v44, v44, v{48+ee}")
        wave_reduce(k, 44, "v_add_f32", 45, 70)
        e("v_mul_f32 v44, 0x3b000000, v44")
        for ee in range(8):
            e(f"v_sub_f32 v{56+ee}, v{48+ee}, v44")
        e("v_mul_f32 v45, v56, v56")
        for ee in range(1, 8): e(f"v_fmac_f32 v45, v{56+ee}, v{56+ee}")
        wave_reduce(k, 45, "v_add_f32", 46, 74)
        e("v_mul_f32 v45, 0x3b000000, v45")
        bf16r(k, 40, 44)
        bf16r(k, 45, 45)
        e("v_add_f32 v45, 0x3727c5ac, v45")
        bf16r(k, 45, 45)
        e("v_sqrt_f32 v45, v45")
        bf16r(k, 41, 45)
        e("v_rcp_f32 v42, v41")
        for p in range(4):
            e(f"v_perm_b32 v{64+p}, v{49+2*p}, v{48+2*p}, s43") if False else None
        e("s_mov_b32 s43, 0x07060302")
        for p in range(4):
            e(f"v_perm_b32 v{64+p}, v{49+2*p}, v{48+2*p}, s43")
        for ee in range(8):
            ln_apply(k, 48 + ee, 40, 41, 42, 43, 44)
        for p in range(4):
            e(f"v_perm_b32 v{68+p}, v{49+2*p}, v{48+2*p}, s43")
        e(f"buffer_store_dwordx4 v[64:67], v7, s[60:63], s40 offen offset:{1024*rr}")
        e(f"""
        s_lshr_b32 s42, s2, 1
        s_lshl_b32 s42, s42, 14
        s_and_b32 s80, s2, 1
        s_lshl_b32 s80, s80, 7
        s_add_u32 s42, s42, s80
        s_add_u32 s42, s42, {16*rr}
        v_lshrrev_b32 v72, 2, v1
        v_lshlrev_b32 v72, 10, v72
        v_and_b32 v73, 3, v1
        v_lshl_add_u32 v72, v73, 8, v72
        v_lshl_add_u32 v72, v5, 5, v72
        buffer_store_dwordx4 v[68:71], v72, s[64:67], s42 offen
        """)
    e(f"{name}_done:")
    e("s_endpgm")
    return k.text(vgpr=80)
```

```python
from gen_common import *
from gen_convt import gen_convt
from gen_ffn import gen_ffn
from gen import gen_prep
def main():
    launches = [("prep_kernel", 769, 256, 17408), ("convt1_kernel", 512, 256, 44544), ("ffn1_kernel", 256, 256, 131072),
                ("convt2_kernel", 512, 256, 44544), ("ffn2_kernel", 256, 256, 131072)]
    parts = [gen_prep(), gen_convt("convt1_kernel", 0), gen_convt("convt2_kernel", 1), gen_ffn("ffn1_kernel", 0), gen_ffn("ffn2_kernel", 1)]
    hdr = ["; generated by work/gen2.py"]
    for (n, g, b, l) in launches:
        hdr.append(f"; @launch kernel={n} grid=({g},1,1) block=({b},1,1) lds={l}")
    hdr.append('.amdgcn_target "amdgcn-amd-amdhsa--gfx950"')
    open(f"cdna_kernels/{NAME}.s", "w").write("\n".join(hdr) + "\n" + "\n".join(parts))
main()
```

```python
from asmlib import Kern
from gen_common import *

OFF_CNT = 0x17C0000

def gen_ffn(name, layer):
    final = layer == 1
    off_xres = OFF_X3 if final else OFF_X1
    k = Kern(name)
    e = k.e
    e("s_cmp_ge_u32 s2, 256")
    e(f"s_cbranch_scc1 {name}_done")
    load_args(k)
    e("v_and_b32 v1, 63, v0")
    e("v_lshrrev_b32 v5, 6, v0")
    e("v_lshlrev_b32 v2, 4, v1")
    e("v_readfirstlane_b32 s50, v5")
    e("s_waitcnt lgkmcnt(0)")
    k.srd(44, 30, OFF_AP, MB2)
    k.srd(52, 30, OFF_W13P, 43 * 65536)
    k.srd(56, 30, OFF_HP + layer * 0x1000000, 128 * 43 * 1024)
    k.srd(84, 30, OFF_W2P, 8 * 43 * 4096)
    k.srd(88, 30, OFF_CNT, 65536)
    e("""
    s_and_b32 s40, s2, 15
    s_lshr_b32 s41, s2, 4
    s_mul_i32 s42, s41, 3
    s_lshl_b32 s43, s41, 1
    s_add_u32 s43, s43, 11
    s_cmp_lt_u32 s41, 11
    s_cselect_b32 s42, s42, s43
    s_lshl_b32 s80, s42, 16
    s_lshl_b32 s81, s50, 13
    s_add_u32 s80, s80, s81
    s_lshl_b32 s48, s40, 3
    s_lshl_b32 s49, s50, 1
    s_add_u32 s48, s48, s49
    s_lshl_b32 s49, s48, 14
    """)
    e("""
    s_and_b32 s92, s41, 1
    s_lshl_b32 s93, s40, 1
    s_add_u32 s92, s92, s93
    s_lshr_b32 s93, s41, 1
    s_mul_i32 s94, s92, 172
    s_add_u32 s94, s94, s50
    s_lshl_b32 s94, s94, 10
    s_mul_i32 s95, s93, 43
    s_add_u32 s95, s95, s50
    s_lshl_b32 s95, s95, 12
    """)
    for sl in range(4):
        e(f"v_add_u32 v{8+sl}, {32768*sl}, v2")
    def dma(g):
        slot = g % 4
        for hh in range(2):
            e(f"s_add_u32 s51, s81, {slot*32768 + hh*4096}")
            e(f"s_mov_b32 m0, s51")
            e(f"s_add_u32 s51, s80, {g*32768 + hh*4096}")
            for i in range(4):
                e(f"buffer_load_dwordx4 v2, s[52:55], s51 offen offset:{1024*i} lds")
    STAMP = False
    stamp_n = [0]
    SREG = list(range(52, 64)) + list(range(10, 16))
    def stamp(i=None):
        if not STAMP: return
        if i is None:
            i = stamp_n[0]; stamp_n[0] += 1
        e("s_memrealtime s[96:97]")
        e("s_waitcnt lgkmcnt(0)")
        e(f"v_accvgpr_write_b32 a{176+i}, s96")
    NST = 11
    def w2loads():
        for i in range(NST):
            e(f"s_add_u32 s51, s95, {i*16384}")
            if i == NST - 1:
                e("s_cmp_eq_u32 s50, 3")
                e("s_cselect_b32 s51, 0x7f000000, s51")
            for c in range(4):
                a = (i * 4 + c) * 4
                e(f"buffer_load_dwordx4 a[{a}:{a+3}], v2, s[84:87], s51 offen offset:{1024*c}")
    ACT = lambda tt, s: 128 + (tt * 16 + s) * 4
    ACC = lambda st, q, tt: (64 if st == 0 else 32) + (q * 2 + tt) * 4
    WF = lambda buf, q: 96 + buf * 16 + q * 4
    def dma_list(g):
        slot = g % 4
        out = []
        for hh in range(2):
            for i in range(4):
                pre = ""
                if i == 0:
                    pre = (f"s_add_u32 s51, s81, {slot*32768 + hh*4096}\ns_mov_b32 m0, s51\n"
                           f"s_add_u32 s61, s80, {g*32768 + hh*4096}\n")
                out.append(pre + f"buffer_load_dwordx4 v2, s[52:55], s61 offen offset:{1024*i} lds")
        return out
    def w2_list():
        out = []
        for i in range(NST):
            for c in range(4):
                a = (i * 4 + c) * 4
                pre = ""
                if c == 0:
                    pre = f"s_add_u32 s63, s95, {i*16384}\n"
                    if i == NST - 1:
                        pre += "s_cmp_eq_u32 s50, 3\ns_cselect_b32 s63, 0x7f000000, s63\n"
                out.append(pre + f"buffer_load_dwordx4 a[{a}:{a+3}], v2, s[84:87], s63 offen offset:{1024*c}")
        return out
    def epi_list(u):
        sub = Kern("x"); ee_ = sub.e
        st = u % 2
        for tt in range(2):
            for hh in range(2):
                ga = ACC(st, hh, tt); ua = ACC(st, 2 + hh, tt)
                for r in range(4):
                    G = ga + r; U = ua + r
                    bf16r(sub, G, G)
                    bf16r(sub, U, U)
                    ee_(f"v_mul_f32 v{20+r}, 0xbfb8aa3b, v{G}")
                    ee_(f"v_exp_f32 v{20+r}, v{20+r}")
                    ee_(f"v_add_f32 v{20+r}, 1.0, v{20+r}")
                    ee_(f"v_rcp_f32 v{20+r}, v{20+r}")
                    ee_(f"v_mul_f32 v{G}, v{G}, v{20+r}")
                    bf16r(sub, G, G)
                    ee_(f"v_mul_f32 v{G}, v{G}, v{U}")
                ee_(f"v_cvt_pk_bf16_f32 v{24+4*tt+2*hh}, v{ga}, v{ga+1}")
                ee_(f"v_cvt_pk_bf16_f32 v{25+4*tt+2*hh}, v{ga+2}, v{ga+3}")
        st_ = []
        for tt in range(2):
            st_.append(f"s_add_u32 s60, s48, {tt}\ns_mul_i32 s60, s60, 43\ns_add_u32 s60, s60, s42\ns_add_u32 s60, s60, {u}\n"
                       f"s_lshl_b32 s60, s60, 10\nbuffer_store_dwordx4 v[{24+4*tt}:{27+4*tt}], v2, s[56:59], s60 offen sc0 sc1")
        return [x.strip() for x in sub.L], st_
    def compute(g, vm, valu, tail):
        slot = g % 4; half = g % 2; st = (g >> 1) % 2
        vb = 8 + slot
        WA = lambda sl, q: 192 + (sl % 4) * 16 + q * 4
        def rd(sl):
            for q in range(4):
                e(f"ds_read_b128 a[{WA(sl,q)}:{WA(sl,q)+3}], v{vb} offset:{sl*4096 + q*1024}")
        rd(0); rd(1); rd(2)
        nv = len(valu); nm = len(vm)
        vi = 0; mi = 0
        for sl in range(8):
            if sl + 3 < 8:
                rd(sl + 3)
                e("s_waitcnt lgkmcnt(12)")
            else:
                e(f"s_waitcnt lgkmcnt({4*(7-sl)})")
            s = half * 8 + sl
            n = 0
            for q in range(4):
                for tt in range(2):
                    a = ACC(st, q, tt)
                    e(f"v_mfma_f32_16x16x32_bf16 v[{a}:{a+3}], a[{WA(sl,q)}:{WA(sl,q)+3}], v[{ACT(tt,s)}:{ACT(tt,s)+3}], v[{a}:{a+3}]")
                    n += 1
                    tgt = (nv * (sl * 8 + n)) // 64
                    while vi < tgt:
                        e(valu[vi]); vi += 1
                    if n in (2, 6):
                        tgm = (nm * (sl * 2 + (1 if n == 2 else 2)) + 15) // 16
                        while mi < tgm:
                            e(vm[mi]); mi += 1
        assert vi == nv and mi == nm
        for t in tail: e(t)
    def zero_acc(st):
        b = 64 if st == 0 else 32
        for r in range(32): e(f"v_mov_b32 v{b+r}, 0")
    def path(nun):
        stamp(0)
        for x in dma_list(0): e(x)
        for tt in range(2):
            for s in range(16):
                e(f"s_add_u32 s51, s49, {tt*16384 + s*1024}")
                e(f"buffer_load_dwordx4 v[{ACT(tt,s)}:{ACT(tt,s)+3}], v2, s[44:47], s51 offen")
        for g in (1, 2, 3):
            for x in dma_list(g): e(x)
        zero_acc(0); zero_acc(1)
        W = w2_list()
        if nun == 3:
            waits = [24, 24, 24, 26, 22, 28]
            vms = [W[0:8], dma_list(4), dma_list(5), W[8:20], W[20:32], W[32:44]]
        else:
            waits = [24, 27, 30, 35]
            vms = [W[0:11], W[11:22], W[22:33], W[33:44]]
        for g in range(2 * nun):
            e(f"s_waitcnt vmcnt({waits[g]})")
            e("s_barrier")
            stamp(1 + g)
            valu = []; tail = []
            if g >= 2 and g % 2 == 0:
                valu, tail = epi_list((g >> 1) - 1)
                st = ((g >> 1) - 1) % 2
                b = 64 if st == 0 else 32
                tail = tail + [f"v_mov_b32 v{b+r}, 0" for r in range(32)]
            compute(g, vms[g], valu, tail)
        valu, tail = epi_list(nun - 1)
        for x in valu: e(x)
        for x in tail: e(x)
        stamp(7)
        e(f"s_branch {name}_g2")
    e("s_cmp_lt_u32 s41, 11")
    e(f"s_cbranch_scc0 {name}_two")
    path(3)
    e(f"{name}_two:")
    path(2)
    e(f"{name}_g2:")
    k.srd(44, 30, OFF_HP + layer * 0x1000000, 128 * 43 * 1024)
    k.srd(56, 30, off_xres, MB2)
    if final: k.srd(60, 26, 0, MB2)
    else:
        k.srd(60, 30, OFF_X2, MB2)
        k.srd(64, 30, OFF_XT, MB2)
        k.srd(68, 30, OFF_ST2, 16384)
    e("""
    v_and_b32 v3, 15, v1
    v_lshrrev_b32 v4, 4, v1
    v_lshl_add_u32 v6, v5, 4, v3
    v_lshlrev_b32 v6, 10, v6
    v_lshl_add_u32 v6, v4, 5, v6
    s_lshl_b32 s48, s92, 16
    s_lshl_b32 s49, s93, 7
    s_add_u32 s48, s48, s49
    s_waitcnt vmcnt(0)
    s_barrier
    """)
    stamp(8)
    e(f"""
    s_add_u32 s51, s40, {64 + 16*layer}
    s_lshl_b32 s51, s51, 8
    v_mov_b32 v7, 0
    v_mov_b32 v8, 1
    s_cmp_lg_u32 s50, 0
    s_cbranch_scc1 {name}_polled
    v_cmp_eq_u32 vcc, 0, v1
    s_and_saveexec_b64 s[72:73], vcc
    buffer_atomic_add v8, v7, s[88:91], s51 offen
    s_mov_b64 exec, s[72:73]
    s_mov_b32 s74, 0
{name}_poll:
    buffer_load_dword v9, v7, s[88:91], s51 offen sc0 sc1
    s_waitcnt vmcnt(0)
    v_readfirstlane_b32 s75, v9
    s_add_u32 s74, s74, 1
    s_cmp_ge_u32 s75, 16
    s_cbranch_scc1 {name}_polled
    s_cmp_lt_u32 s74, 0x400000
    s_cbranch_scc0 {name}_polled
    s_sleep 1
    s_branch {name}_poll
{name}_polled:
    s_barrier
    """)
    stamp(9)
    e("""
    buffer_load_dwordx4 v[16:19], v6, s[56:59], s48 offen
    buffer_load_dwordx4 v[20:23], v6, s[56:59], s48 offen offset:16
    """)
    ACC2 = lambda c, tt: 64 + (tt * 4 + c) * 4
    HF = lambda i, tt: 128 + (i % 8) * 16 + tt * 4
    def hloads(i):
        for tt in range(4):
            e(f"s_add_u32 s51, s94, {tt*43*1024 + i*4096}")
            e(f"buffer_load_dwordx4 v[{HF(i,tt)}:{HF(i,tt)+3}], v2, s[44:47], s51 offen sc0 sc1")
    for r in range(64): e(f"v_mov_b32 v{64+r}, 0")
    for i in range(8): hloads(i)
    for i in range(NST):
        issued = min(NST, 8 + i)
        e(f"s_waitcnt vmcnt({4*(issued-1-i)})")
        if i == 0: stamp(10)
        for tt in range(4):
            for c in range(4):
                a = ACC2(c, tt); w = (i * 4 + c) * 4
                e(f"v_mfma_f32_16x16x32_bf16 v[{a}:{a+3}], a[{w}:{w+3}], v[{HF(i,tt)}:{HF(i,tt)+3}], v[{a}:{a+3}]")
        if i + 8 < NST: hloads(i + 8)
    stamp(11)
    e("v_lshl_add_u32 v7, v5, 14, v2")
    for tc in range(16):
        e(f"ds_write_b128 v7, v[{64+4*tc}:{67+4*tc}] offset:{1024*tc}")
    e("s_waitcnt lgkmcnt(0)")
    e("s_barrier")
    e("v_lshl_add_u32 v7, v5, 12, v2")
    for c in range(4):
        for p in range(4):
            e(f"ds_read_b128 v[{64+16*c+4*p}:{67+16*c+4*p}], v7 offset:{16384*p + 1024*c}")
    e("s_waitcnt lgkmcnt(0)")
    for c in range(4):
        b = 64 + 16 * c
        for r in range(4):
            e(f"v_add_f32 v{b+r}, v{b+r}, v{b+4+r}")
            e(f"v_add_f32 v{b+8+r}, v{b+8+r}, v{b+12+r}")
            e(f"v_add_f32 v{b+r}, v{b+r}, v{b+8+r}")
            bf16r(k, b + r, b + r)
            idx = 4 * c + r
            dw = idx >> 1
            if idx & 1: e(f"v_and_b32 v24, 0xffff0000, v{16+dw}")
            else: e(f"v_lshlrev_b32 v24, 16, v{16+dw}")
            e(f"v_add_f32 v{b+r}, v{b+r}, v24")
            bf16r(k, b + r, b + r)
    e("s_mov_b32 s43, 0x07060302")
    for c in range(4):
        b = 64 + 16 * c
        e(f"v_perm_b32 v{32+2*c}, v{b+1}, v{b}, s43")
        e(f"v_perm_b32 v{33+2*c}, v{b+3}, v{b+2}, s43")
    e("buffer_store_dwordx4 v[32:35], v6, s[60:63], s48 offen")
    e("buffer_store_dwordx4 v[36:39], v6, s[60:63], s48 offen offset:16")
    if not final:
        e("v_mov_b32 v24, 0")
        e("v_mov_b32 v25, 0")
        for c in range(4):
            b = 64 + 16 * c
            for r in range(4):
                e(f"v_add_f32 v24, v24, v{b+r}")
                e(f"v_fmac_f32 v25, v{b+r}, v{b+r}")
        e(f"""
        v_xor_b32 v26, 16, v1
        v_lshlrev_b32 v26, 2, v26
        v_xor_b32 v27, 32, v1
        v_lshlrev_b32 v27, 2, v27
        ds_bpermute_b32 v28, v26, v24
        ds_bpermute_b32 v29, v26, v25
        s_waitcnt lgkmcnt(0)
        v_add_f32 v24, v24, v28
        v_add_f32 v25, v25, v29
        ds_bpermute_b32 v28, v27, v24
        ds_bpermute_b32 v29, v27, v25
        s_waitcnt lgkmcnt(0)
        v_add_f32 v24, v24, v28
        v_add_f32 v25, v25, v29
        v_lshl_add_u32 v26, v5, 4, v3
        v_lshlrev_b32 v26, 3, v26
        s_lshl_b32 s51, s92, 9
        v_cmp_gt_u32 vcc, 16, v1
        s_and_saveexec_b64 s[72:73], vcc
        buffer_atomic_add_f32 v24, v26, s[68:71], s51 offen
        buffer_atomic_add_f32 v25, v26, s[68:71], s51 offen offset:4
        s_mov_b64 exec, s[72:73]
        s_barrier
        v_lshl_add_u32 v26, v5, 4, v3
        v_mul_u32_u24 v26, 144, v26
        v_lshl_add_u32 v26, v4, 5, v26
        ds_write_b128 v26, v[32:35]
        ds_write_b128 v26, v[36:39] offset:16
        s_waitcnt lgkmcnt(0)
        s_barrier
        """)
        for it in range(2):
            e(f"v_add_u32 v26, {4*it}, v5")
            e(f"v_mul_u32_u24 v26, {8*144}, v26")
            e(f"v_lshl_add_u32 v26, v1, 1, v26")
            for ee in range(8):
                e(f"ds_read_u16 v{40+ee}, v26 offset:{144*ee}")
            e("s_waitcnt lgkmcnt(0)")
            for p in range(4):
                e(f"v_lshl_or_b32 v{48+p}, v{41+2*p}, 16, v{40+2*p}")
            e(f"""
            v_lshlrev_b32 v27, 12, v1
            v_lshl_add_u32 v27, v5, 4, v27
            s_lshl_b32 s51, s93, 18
            s_lshl_b32 s49, s92, 7
            s_add_u32 s51, s51, s49
            s_add_u32 s51, s51, {64*it}
            buffer_store_dwordx4 v[48:51], v27, s[64:67], s51 offen
            """)
    if STAMP:
        stamp(12)
        e("s_waitcnt vmcnt(0)")
        stamp(13)
        e("s_lshl_b32 s98, s2, 7")
        e(f"s_add_u32 s98, s98, {0x8000}")
        e("v_mov_b32 v31, 0")
        e("s_cmp_lg_u32 s50, 0")
        e(f"s_cbranch_scc1 {name}_done")
        for i in range(14):
            e(f"buffer_store_dword a{176+i}, v31, s[88:91], s98 offen offset:{4*i}")
    e(f"{name}_done:")
    e("s_endpgm")
    return k.text(vgpr=256, agpr=256)
```
